```python
import torch

def _softmax(x, axis=-1):
    return torch.softmax(x, dim=axis)
def _gelu(x):
    return torch.nn.functional.gelu(x, approximate="tanh")
def _silu(x):
    return torch.nn.functional.silu(x)
def _sigmoid(x):
    return torch.sigmoid(x)
def _layernorm(x, axis=-1, eps=1e-5):
    m = x.mean(dim=axis, keepdim=True)
    v = x.var(dim=axis, keepdim=True, unbiased=False)
    return (x - m) / torch.sqrt(v + eps)
def _scatter_add(tgt, idx, src, axis=0):
    return tgt.clone().index_add_(axis, idx, src)
def _segment_sum(src, seg, n):
    out = torch.zeros((n,) + src.shape[1:], dtype=src.dtype)
    return out.index_add_(0, seg, src)
def _pad(x, pw):
    flat = tuple(v for pair in reversed(pw) for v in pair)
    return torch.nn.functional.pad(x, flat)

kernel_name = 'recurrent_scan__sliding_block_cached__dense_activation_squared_relu__decode'

def setup_inputs():

    _w = (lambda a: (lambda t: t.to(torch.bfloat16) if t.is_floating_point() else t)(torch.as_tensor(a)))
    def _A_setup():
        B, Sq, D = 4, 1, 512
        Hq, Hkv, Sk, Dh = 32, 8, 4096, 128
        assert Hq % Hkv == 0, (Hq, Hkv)
        return {
            "x": _w((lambda *s: torch.randn(*s, dtype=torch.bfloat16) * 0.05)(B, Sq, D)),
            "k_cache": _w((lambda *s: torch.randn(*s, dtype=torch.bfloat16) * 0.8)(B, Hkv, Sk, Dh)),
            "v_cache": _w((lambda *s: torch.randn(*s, dtype=torch.bfloat16) * 0.2)(B, Hkv, Sk, Dh)),
            "wq": _w((lambda *s: torch.randn(*s, dtype=torch.bfloat16) * 0.8)(D, Hq * Dh) * (D ** -0.5)),
            "wo": _w((lambda *s: torch.randn(*s, dtype=torch.bfloat16) * 0.2)(Hq * Dh, D) * ((Hq * Dh) ** -0.5)),
        }
    _A_in = _A_setup()

    def _B_setup():
        B, S, D, F = 4, 1, 512, 1792
        return {
            "x": _w((lambda *s: torch.randn(*s, dtype=torch.bfloat16) * 0.05)(B, S, D)),
            "w1": _w((lambda *s: torch.randn(*s, dtype=torch.bfloat16) * 0.1)(D, F)),
            "b1": _w((lambda *s: torch.randn(*s, dtype=torch.bfloat16) * 0.4)(F)),
            "w2": _w((lambda *s: torch.randn(*s, dtype=torch.bfloat16) * 0.1)(F, D)),
            "b2": _w((lambda *s: torch.randn(*s, dtype=torch.bfloat16) * 6.4)(D)),
        }
    _B_in = _B_setup()

    return {
        "A_x": _A_in["x"],
        "A_k_cache": _A_in["k_cache"],
        "A_v_cache": _A_in["v_cache"],
        "A_wq": _A_in["wq"],
        "A_wo": _A_in["wo"],
        "B_x": _B_in["x"],
        "B_w1": _B_in["w1"],
        "B_b1": _B_in["b1"],
        "B_w2": _B_in["w2"],
        "B_b2": _B_in["b2"],
    }

def reference(A_x, A_k_cache, A_v_cache, A_wq, A_wo, B_x, B_w1, B_b1, B_w2, B_b2):
    def _A_ref(x, k_cache, v_cache, wq, wo):
        B, Sq, D = x.shape
        Hq, Dh = 32, 128
        Hkv, Sk = k_cache.shape[1], k_cache.shape[2]
        W = min(4096, max(256, Sk // 4))
        rep = Hq // Hkv
        q = (lambda x, *d: x.permute(*d))((x @ wq).reshape(B, Sq, Hq, Dh), 0, 2, 1, 3)
        k = (lambda x, n, axis: torch.repeat_interleave(x, n, dim=axis))(k_cache[:, :, Sk - W:, :], rep, axis=1)
        v = (lambda x, n, axis: torch.repeat_interleave(x, n, dim=axis))(v_cache[:, :, Sk - W:, :], rep, axis=1)
        scores = torch.einsum("bhqd,bhkd->bhqk", q, k) * (Dh ** -0.5)
        p = _softmax(scores, axis=-1)
        o = torch.einsum("bhqk,bhkd->bhqd", p, v)
        return (lambda x, *d: x.permute(*d))(o, 0, 2, 1, 3).reshape(B, Sq, Hq * Dh) @ wo

    def _B_ref(x, w1, b1, w2, b2):
        h = torch.einsum("bsd,df->bsf", x, w1) + b1
        zero = torch.zeros_like(h)
        r = torch.where(h > zero, h, zero)
        h = r * r
        out = torch.einsum("bsf,fd->bsd", h, w2) + b2
        return out

    x = A_x
    xn = _layernorm(x, axis=-1)
    s = _A_ref(xn, A_k_cache, A_v_cache, A_wq, A_wo)
    g = _silu(_B_ref(xn, B_w1, B_b1, B_w2, B_b2))
    return x + s * g
```

```python
import sys, argparse

KN = "recurrent_scan__sliding_block_cached__dense_activation_squared_relu__decode_kernel"

L_WQ, L_W1, L_K, L_V, L_WO, L_W2 = 0, 16384, 24576, 57344, 90112, 106496
L_XN = 114688
L_Q = L_XN + 4352
L_P = L_Q + 1280
L_O = L_P + 1280
L_H = L_O + 1280
L_MX = L_H + 768
L_LS = L_MX + 128
L_SY = L_LS + 128
LDS_BYTES = L_SY + 64
W_QP, W_HP, W_OP, W_SP = 0x10000, 0x50000, 0x90000, 0x130000
W_ST = 0x200000
WS_REC = 0x400000
LOG2E = 0x3FB8AA3B
SCALE = 0x3DB504F3
LCG_A, LCG_C = 1664525, 1013904223

HEADER = open("recurrent_scan__sliding_block_cached__dense_activation_squared_relu__decode.s.ref").read().split("; Override launch")[0]


class G:
    def __init__(s, opt):
        s.L = []
        s.o = opt
        s.nl = 0
        s.npad = 0

    def __call__(s, x):
        for ln in x.strip("\n").split("\n"):
            s.L.append("    " + ln.strip() if not ln.strip().endswith(":") else ln.strip())

    def lab(s, p="L"):
        s.nl += 1
        return f"{p}{s.nl}"

    def stamp(s, k):
        if s.o.diag:
            s(f"s_memrealtime s[{80+2*k}:{81+2*k}]")

    def pad(s):
        s.npad += 1
        k = s.npad
        tgt = "L_mid" if k <= 4 else "L_warm_done"
        s(f"L_pad{k}:")
        s(f"s_cbranch_execz {tgt}")

    def signal(s, ph, restore=True):
        s(f"""v_mov_b32 v9, {ph}
        s_mov_b64 exec, 1
        ds_write_b32 v12, v9""")
        if restore:
            s("s_mov_b64 exec, -1")

    def wait(s, conds):
        l = s.lab("L_w")
        r = s.lab("L_wr")
        s.retry.append((r, l))
        s(f"{l}:")
        s("ds_read_b32 v9, v11")
        s("s_waitcnt lgkmcnt(0)")
        for mask, ph in conds:
            s(f"""v_cmp_le_u32 vcc, {ph}, v9
            s_and_b32 s44, vcc_lo, {mask:#x}
            s_cmp_eq_u32 s44, {mask:#x}
            s_cbranch_scc0 {r}""")

    def tagcheck(s, d, t0, t1, dst="vcc"):
        s(f"""v_perm_b32 v{t0}, v{d+1}, v{d}, s41
        v_perm_b32 v{t1}, v{d+3}, v{d+2}, s41
        v_lshl_or_b32 v{t0}, v{t1}, 16, v{t0}
        v_cmp_eq_u32 {dst}, s40, v{t0}""")

    def embed(s, d):
        for i in range(4):
            s(f"v_and_or_b32 v{d+i}, v{d+i}, v10, s{36+i}")

    def gemv(s, nstep, vact, vtr, tr_step, tr_half):
        for m in range(nstep):
            s(f"ds_read_b128 v[{36+4*m}:{39+4*m}], v{vact} offset:{64*m}")
            s(f"ds_read_b64_tr_b16 v[{20+4*m}:{21+4*m}], v{vtr} offset:{tr_step*m}")
            s(f"ds_read_b64_tr_b16 v[{22+4*m}:{23+4*m}], v{vtr} offset:{tr_step*m+tr_half}")
        for m in range(nstep):
            s(f"s_waitcnt lgkmcnt({3*(nstep-1-m)})")
            c = "0" if m == 0 else "v[52:55]"
            s(f"v_mfma_f32_16x16x32_bf16 v[52:55], v[{20+4*m}:{23+4*m}], v[{36+4*m}:{39+4*m}], {c}")

    def publish(s, voff, soff="0"):
        s("s_mov_b64 exec, s[46:47]")
        s("s_nop 6")
        s.embed(52)
        s(f"buffer_store_dwordx4 v[52:55], v{voff}, s[32:35], {soff} offen sc1")
        s("s_mov_b64 exec, -1")


def bf16r(g, dst, src):
    g(f"v_cvt_pk_bf16_f32 v{dst}, v{src}, v{src}")
    g(f"v_lshlrev_b32 v{dst}, 16, v{dst}")


def allreduce_rows(g, v, t, op):
    g(f"""v_mov_b32 v{t}, v{v}
    s_nop 1
    v_permlane16_swap_b32 v{v}, v{t}
    {op} v{v}, v{v}, v{t}
    v_mov_b32 v{t}, v{v}
    s_nop 1
    v_permlane32_swap_b32 v{v}, v{t}
    {op} v{v}, v{v}, v{t}""")


def allreduce64(g, v, t):
    for r in (8, 4, 2, 1):
        g("s_nop 1")
        g(f"v_add_f32_dpp v{v}, v{v}, v{v} row_ror:{r} row_mask:0xf bank_mask:0xf")
    allreduce_rows(g, v, t, "v_add_f32")


def build(o):
    g = G(o)
    g.retry = []
    W = o.win
    nt = o.nt
    g.stamp(0)
    g(f"""s_cmp_ge_u32 s2, 256
    s_cbranch_scc1 L_end
    s_load_dwordx16 s[4:19], s[0:1], 0
    s_load_dwordx8 s[20:27], s[0:1], 64
    s_load_dwordx2 s[32:33], s[0:1], 96
    v_lshrrev_b32 v1, 6, v0
    v_and_b32 v0, 63, v0
    s_and_b32 s30, s2, 7
    v_readfirstlane_b32 s3, v1
    s_lshr_b32 s31, s2, 3
    s_mov_b32 s34, {WS_REC:#x}
    s_mov_b32 s35, 0x20000
    s_mov_b32 s42, {o.spin:#x}
    s_cmp_lt_u32 s3, 4
    s_cbranch_scc1 L_loader
    s_cmp_lt_u32 s3, 8
    s_cbranch_scc1 L_ln_entry
    s_mov_b64 exec, 0
    s_cmp_eq_u32 s3, 8
    s_cbranch_scc1 L_pad1
    s_cmp_eq_u32 s3, 9
    s_cbranch_scc1 L_pad2
    s_cmp_eq_u32 s3, 10
    s_cbranch_scc1 L_pad3
    s_branch L_pad4
    L_mid:
    s_barrier
    s_cmp_eq_u32 s3, 8
    s_cbranch_scc1 L_pad5
    s_cmp_eq_u32 s3, 9
    s_cbranch_scc1 L_pad6
    s_cmp_eq_u32 s3, 10
    s_cbranch_scc1 L_pad7
    s_branch L_pad8
    L_warm_done:
    s_mov_b64 exec, -1
    s_waitcnt lgkmcnt(0)
    s_load_dword s45, s[32:33], 0
    s_branch L_P
    L_end:
    s_endpgm""")

    g(f"""L_loader:
    s_setprio {o.lprio}
    v_lshrrev_b32 v1, 3, v0
    v_and_b32 v2, 7, v0
    v_bfe_u32 v3, v0, 4, 1
    s_and_b32 s43, s3, 1
    s_lshl_b32 s43, s43, 2
    v_lshl_or_b32 v3, v3, 1, s43
    v_xor_b32 v2, v2, v3
    v_lshlrev_b32 v2, 4, v2
    v_lshl_add_u32 v4, v1, 13, v2
    s_lshr_b32 s44, s31, 3
    s_lshl_b32 s44, s44, 20
    s_and_b32 s45, s31, 7
    s_lshl_b32 s46, s30, 3
    s_add_u32 s45, s45, s46
    s_lshl_b32 s45, s45, 7
    s_add_u32 s44, s44, s45
    s_lshl_b32 s45, s3, 16
    s_add_u32 s50, s44, s45
    s_mov_b32 s51, 0x40000
    s_lshl_b32 s45, s3, 10
    s_mov_b32 m0, s45
    s_mov_b32 s38, 0x400000
    s_mov_b32 s39, 0x20000
    s_movk_i32 s43, 3584
    v_mul_u32_u24 v5, s43, v1
    v_add_u32 v5, v5, v2
    v_lshl_add_u32 v6, v1, 10, v2
    v_lshrrev_b32 v1, 4, v0
    v_and_b32 v2, 15, v0
    s_lshl_b32 s43, s3, 2
    v_or_b32 v3, s43, v1
    v_xor_b32 v3, v2, v3
    v_lshlrev_b32 v3, 4, v3
    v_lshl_add_u32 v7, v1, 8, v3
    s_lshr_b32 s43, s3, 1
    s_lshl_b32 s43, s43, 2
    v_or_b32 v3, s43, v1
    v_lshlrev_b32 v3, 1, v3
    v_xor_b32 v3, v2, v3
    v_lshlrev_b32 v3, 4, v3
    v_lshl_add_u32 v8, v1, 8, v3
    s_mul_i32 s44, s30, 229376
    s_lshl_b32 s46, s31, 7
    s_add_u32 s44, s44, s46
    s_mul_i32 s46, s3, 28672
    s_add_u32 s52, s44, s46
    s_and_b32 s44, s31, 3
    s_lshl_b32 s46, s44, 3
    s_add_u32 s46, s46, s30
    s_lshl_b32 s46, s46, 20
    s_lshr_b32 s47, s31, 2
    s_lshl_b32 s48, s47, 15
    s_add_u32 s46, s46, s48
    s_add_u32 s46, s46, s45
    s_add_u32 s53, s46, 786432
    s_mov_b32 s54, s53
    s_lshl_b32 s46, s30, 2
    s_add_u32 s46, s46, s44
    s_lshl_b32 s46, s46, 17
    s_lshl_b32 s47, s47, 7
    s_add_u32 s46, s46, s47
    s_lshl_b32 s48, s3, 13
    s_add_u32 s55, s46, s48
    s_lshl_b32 s46, s31, 16
    s_lshl_b32 s47, s30, 7
    s_add_u32 s46, s46, s47
    s_add_u32 s56, s46, s48
    s_cmp_lt_u32 s31, 28
    s_cselect_b32 s57, 1835008, 0
    s_mov_b32 s58, 114688
    s_mov_b32 s59, 0x8000
    s_lshl_b32 s44, s3, 2
    s_add_u32 s44, s44, {L_SY}
    v_mov_b32 v12, s44
    s_waitcnt lgkmcnt(0)""")
    g.stamp(1)
    phases = [("v4", 10, None, 50, "s51", 4), ("v5", 16, "s57", 52, "s58", 2), ("v7", 6, "0x2000000", 53, 4096, 8),
              ("v8", 8, None, 54, 4096, 8), ("v6", 12, "0x400000", 55, "s59", 4), ("v6", 20, "s57", 56, "s59", 2)]
    ends = [3, 5, 13, 21, 25, 27]
    n = 0
    flagged = 0

    def flag_upto(done_idx):
        nonlocal flagged
        ph = flagged
        while ph < 4 and ends[ph] <= done_idx:
            ph += 1
        if ph > flagged:
            flagged = ph
            g.stamp(1 + ph)
            g.signal(ph)

    for (va, base, size, so, step, cnt) in phases:
        g(f"s_mov_b32 s36, s{base}")
        g(f"s_mov_b32 s37, s{base+1}")
        if size is not None:
            g(f"s_mov_b32 s38, {size}")
        for t in range(cnt):
            if n == W:
                g("s_barrier")
            if n >= W:
                g(f"s_waitcnt vmcnt({W-1})")
                flag_upto(n - W)
            g(f"buffer_load_dwordx4 {va}, s[36:39], s{so} offen {nt} lds")
            g("s_addk_i32 m0, 0x1000")
            if t + 1 < cnt:
                g(f"s_addk_i32 s{so}, {step}" if isinstance(step, int) else f"s_add_u32 s{so}, s{so}, {step}")
            elif False:
                pass
            n += 1
    for ph in range(flagged, 4):
        g(f"s_waitcnt vmcnt({27 - ends[ph]})")
        flag_upto(ends[ph])
    g("s_waitcnt vmcnt(0)")
    g.stamp(6)
    if o.diag:
        g("s_branch L_diag")
    else:
        g("s_endpgm")

    g(f"""L_ln_entry:
    v_and_b32 v1, 15, v0
    v_lshlrev_b32 v1, 2, v1
    v_add_u32 v11, {L_SY}, v1
    v_mov_b32 v2, 0
    ds_write_b32 v11, v2
    s_lshl_b32 s44, s3, 10
    s_sub_u32 s44, s44, 4096
    v_lshl_add_u32 v1, v0, 4, s44
    s_waitcnt lgkmcnt(0)
    global_load_dwordx4 v[20:23], v1, s[4:5] {o.xnt}
    s_load_dword s45, s[32:33], 0
    s_barrier
    L_P:""")
    g.stamp(1)
    g(f"""s_sub_u32 s43, s3, 4
    v_mov_b32 v10, 0xffffff00
    v_mov_b32 v19, 0
    v_and_b32 v1, 15, v0
    v_lshlrev_b32 v2, 2, v1
    v_add_u32 v11, {L_SY}, v2
    s_lshl_b32 s44, s3, 2
    s_add_u32 s44, s44, {L_SY}
    v_mov_b32 v12, s44
    v_lshrrev_b32 v13, 4, v0
    v_and_b32 v14, 3, v0
    s_mov_b32 s46, 0x000f000f
    s_mov_b32 s47, 0x000f000f
    s_mov_b32 s41, 0x0c0c0400
    s_and_b32 s60, s43, 3
    s_and_b32 s61, s31, 3
    s_lshr_b32 s62, s31, 2
    v_bfe_u32 v2, v0, 2, 2
    v_lshrrev_b32 v3, 1, v2
    v_and_b32 v4, 1, v13
    v_lshl_or_b32 v3, v4, 1, v3
    v_lshlrev_b32 v3, 1, v3
    v_lshrrev_b32 v5, 1, v14
    s_lshl_b32 s44, s60, 1
    v_or_b32 v5, s44, v5
    v_xor_b32 v3, v3, v5
    v_lshlrev_b32 v3, 4, v3
    v_and_b32 v6, 1, v0
    v_lshl_or_b32 v3, v6, 3, v3
    v_lshl_add_u32 v7, v13, 3, v2
    v_lshl_add_u32 v18, v7, 7, v3
    v_lshl_or_b32 v3, v4, 2, v2
    v_lshlrev_b32 v3, 1, v3
    v_lshrrev_b32 v5, 1, v14
    s_lshl_b32 s44, s43, 1
    v_or_b32 v5, s44, v5
    v_xor_b32 v3, v3, v5
    v_lshlrev_b32 v3, 4, v3
    v_lshl_or_b32 v3, v6, 3, v3
    v_lshl_add_u32 v3, v7, 8, v3
    v_add_u32 v75, {L_V}, v3
    v_lshlrev_b32 v13, 4, v13
    s_movk_i32 s44, 320
    v_mad_u32_u24 v76, v14, s44, v13
    s_cmp_ge_u32 s43, 4
    s_cbranch_scc1 L_s1b""")
    g(f"""s_lshr_b32 s44, s31, 3
    s_lshl_b32 s44, s44, 8
    s_add_u32 s44, s44, {L_XN}
    s_movk_i32 s63, 1088
    v_mad_u32_u24 v16, v14, s63, v13
    v_add_u32 v16, s44, v16
    s_mul_i32 s44, s43, 1088
    s_add_u32 s44, s44, {L_XN}
    v_lshl_add_u32 v17, v0, 4, s44
    s_lshl_b32 s44, s30, 15
    s_and_b32 s63, s31, 7
    s_lshl_b32 s63, s63, 10
    s_add_u32 s44, s44, s63
    s_lshr_b32 s63, s31, 3
    s_lshl_b32 s63, s63, 8
    s_add_u32 s44, s44, s63
    s_lshl_b32 s63, s60, 6
    s_add_u32 s44, s44, s63
    s_add_u32 s44, s44, {W_QP}
    v_lshl_add_u32 v15, v14, 13, v13
    v_add_u32 v15, s44, v15
    s_waitcnt vmcnt(0)""")
    g.stamp(2)
    for i in range(4):
        g(f"v_lshlrev_b32 v{24+2*i}, 16, v{20+i}")
        g(f"v_and_b32 v{25+2*i}, 0xffff0000, v{20+i}")
    g("""v_add_f32 v1, v24, v25
    v_add_f32 v2, v26, v27
    v_add_f32 v3, v28, v29
    v_add_f32 v4, v30, v31
    v_add_f32 v1, v1, v2
    v_add_f32 v3, v3, v4
    v_add_f32 v1, v1, v3""")
    allreduce64(g, 1, 2)
    g("v_mul_f32 v1, 0x3b000000, v1")
    for i in range(8):
        g(f"v_sub_f32 v{32+i}, v{24+i}, v1")
    g("v_mul_f32 v3, v32, v32")
    for i in range(1, 8):
        g(f"v_fmac_f32 v3, v{32+i}, v{32+i}")
    allreduce64(g, 3, 2)
    g("v_mul_f32 v3, 0x3b000000, v3")
    bf16r(g, 1, 1)
    bf16r(g, 3, 3)
    g("v_add_f32 v3, 0x3727c5ac, v3")
    bf16r(g, 3, 3)
    g("v_sqrt_f32 v3, v3")
    for i in range(8):
        g(f"v_sub_f32 v{24+i}, v{24+i}, v1")
    bf16r(g, 3, 3)
    for i in range(4):
        g(f"v_cvt_pk_bf16_f32 v{20+i}, v{24+2*i}, v{25+2*i}")
    g("v_rcp_f32 v3, v3")
    for i in range(4):
        g(f"v_lshlrev_b32 v{24+2*i}, 16, v{20+i}")
        g(f"v_and_b32 v{25+2*i}, 0xffff0000, v{20+i}")
    for i in range(8):
        g(f"v_mul_f32 v{24+i}, v{24+i}, v3")
    for i in range(4):
        g(f"v_cvt_pk_bf16_f32 v{20+i}, v{24+2*i}, v{25+2*i}")
    g("ds_write_b128 v17, v[20:23]")
    g.signal(1)
    g.pad()
    tagsetup = f"""s_mul_i32 s40, s45, {LCG_A}
    s_add_u32 s40, s40, {LCG_C}
    s_and_b32 s36, s40, 0xff
    s_bfe_u32 s37, s40, 0x80008
    s_bfe_u32 s38, s40, 0x80010
    s_lshr_b32 s39, s40, 24"""
    g("s_waitcnt lgkmcnt(0)")
    g(tagsetup)
    g.stamp(3)
    g.wait([(0x0f0, 1), (0x00f, 1)])
    g.stamp(4)
    g.gemv(4, 16, 18, 4096, 512)
    g.publish(15)
    g("s_branch L_qg")
    g(f"""L_s1b:
    s_lshl_b32 s44, s30, 7
    s_add_u32 s44, s44, {L_XN}
    s_movk_i32 s63, 1088
    v_mad_u32_u24 v16, v14, s63, v13
    v_add_u32 v16, s44, v16
    v_add_u32 v17, {L_W1}, v18
    s_lshl_b32 s44, s31, 13
    s_lshl_b32 s63, s30, 8
    s_add_u32 s44, s44, s63
    s_lshl_b32 s63, s60, 6
    s_add_u32 s44, s44, s63
    s_add_u32 s44, s44, {W_HP}
    v_lshl_add_u32 v15, v14, 11, v13
    v_add_u32 v15, s44, v15
    s_min_u32 s44, s31, 27
    s_lshl_b32 s44, s44, 7
    v_and_b32 v1, 15, v0
    v_lshlrev_b32 v1, 3, v1
    v_lshrrev_b32 v2, 3, v13
    v_add3_u32 v1, v1, v2, s44
    global_load_ushort v77, v1, s[18:19]
    s_lshl_b32 s44, s30, 7
    s_lshl_b32 s63, s62, 4
    s_add_u32 s44, s44, s63
    s_and_b32 s63, s43, 1
    s_lshl_b32 s63, s63, 3
    s_add_u32 s44, s44, s63
    v_and_b32 v1, 1, v0
    v_lshlrev_b32 v1, 2, v1
    v_bfe_u32 v2, v0, 4, 1
    v_lshlrev_b32 v2, 1, v2
    v_add3_u32 v1, v1, v2, s44
    global_load_ushort v78, v1, s[22:23]
    s_lshl_b32 s44, s61, 10
    v_add_u32 v19, s44, v1
    global_load_ushort v79, v19, s[4:5]
    s_waitcnt lgkmcnt(0)""")
    g(tagsetup)
    g("""s_cmp_ge_u32 s31, 28
    s_cbranch_scc1 L_qg""")
    g.stamp(3)
    g.wait([(0x0f0, 1), (0x00f, 2)])
    g.stamp(4)
    g.gemv(2, 16, 17, 4096, 512)
    g.publish(15)
    g("L_qg:")
    g.stamp(5)
    g.pad()
    g(f"""s_lshl_b32 s44, s30, 2
    s_add_u32 s44, s44, s61
    s_lshl_b32 s44, s44, 3
    s_add_u32 s44, s44, s43
    s_lshl_b32 s44, s44, 10
    s_add_u32 s44, s44, {W_QP}
    v_lshl_add_u32 v15, v0, 4, s44
    s_add_u32 s48, s32, s44
    s_addc_u32 s49, s33, 0
    s_lshr_b32 s44, s43, 1
    s_mul_i32 s44, s44, 320
    s_and_b32 s63, s43, 1
    s_lshl_b32 s63, s63, 7
    s_add_u32 s44, s44, s63
    s_add_u32 s44, s44, {L_Q}
    v_and_b32 v1, 15, v0
    v_lshlrev_b32 v2, 3, v1
    v_lshrrev_b32 v3, 3, v13
    v_add3_u32 v16, v2, v3, s44
    s_lshl_b32 s44, s43, 12
    s_add_u32 s44, s44, {L_K}
    v_lshrrev_b32 v3, 4, v13
    v_xor_b32 v3, v3, v1
    v_lshlrev_b32 v3, 4, v3
    v_lshl_add_u32 v3, v1, 8, v3
    v_add_u32 v60, s44, v3
    v_xor_b32 v61, 64, v60
    v_xor_b32 v62, 0x80, v60
    v_xor_b32 v63, 0xc0, v60
    L_qh:""")
    for k in range(4):
        g(f"s_load_dwordx2 s[{64+2*k}:{65+2*k}], s[48:49], {256*k+240} glc")
    g("s_waitcnt lgkmcnt(0)")
    for k in range(4):
        g(f"s_xor_b32 s{64+2*k}, s{64+2*k}, s36")
        g(f"s_xor_b32 s{65+2*k}, s{65+2*k}, s37")
    g("""s_or_b32 s64, s64, s65
    s_or_b32 s66, s66, s67
    s_or_b32 s68, s68, s69
    s_or_b32 s70, s70, s71
    s_or_b32 s64, s64, s66
    s_or_b32 s68, s68, s70
    s_or_b32 s64, s64, s68
    s_and_b32 s64, s64, 0xff
    s_cbranch_scc1 L_qh_r""")
    g.retry.append(("L_qh_r", "L_qh"))
    g.stamp(6)
    g("""L_qp:
    buffer_load_dwordx4 v[56:59], v15, s[32:35], 0 offen sc1
    s_waitcnt vmcnt(0)""")
    g.tagcheck(56, 1, 2)
    g("""s_cmp_eq_u64 vcc, exec
    s_cbranch_scc0 L_qp_r""")
    g.retry.append(("L_qp_r", "L_qp"))
    g.stamp(7)
    g("""v_permlane32_swap_b32 v56, v58
    v_permlane32_swap_b32 v57, v59
    v_add_f32 v56, v56, v58
    v_add_f32 v57, v57, v59
    s_nop 1
    v_permlane16_swap_b32 v56, v57
    v_add_f32 v56, v56, v57
    v_cvt_pk_bf16_f32 v56, v56, v56
    ds_write_b16 v16, v56""")
    g.signal(2)
    g(f"v_add_u32 v16, {L_Q}, v76")
    g.wait([(0xff0, 2), (0x00f, 3)])
    for m in range(4):
        g(f"ds_read_b128 v[{36+4*m}:{39+4*m}], v16 offset:{64*m}")
        g(f"ds_read_b128 v[{20+4*m}:{23+4*m}], v{60+m}")
    g(f"""s_lshl_b32 s44, s43, 2
    s_add_u32 s44, s44, {L_MX}
    v_lshlrev_b32 v64, 5, v14
    v_add_u32 v65, s44, v64
    v_add_u32 v64, {L_MX}, v64""")
    for m in range(4):
        g(f"s_waitcnt lgkmcnt({2*(3-m)})")
        c = "0" if m == 0 else "v[52:55]"
        g(f"v_mfma_f32_16x16x32_bf16 v[52:55], v[{20+4*m}:{23+4*m}], v[{36+4*m}:{39+4*m}], {c}")
    g(f"""s_lshl_b32 s44, s43, 5
    s_add_u32 s44, s44, {L_P}
    s_movk_i32 s63, 320
    v_lshrrev_b32 v1, 1, v13
    v_mad_u32_u24 v66, v14, s63, v1
    v_add_u32 v66, s44, v66
    s_nop 2""")
    g.pad()
    for rep in range(2):
        g("""v_cvt_pk_bf16_f32 v1, v52, v53
        v_cvt_pk_bf16_f32 v2, v54, v55
        v_lshlrev_b32 v52, 16, v1
        v_and_b32 v53, 0xffff0000, v1
        v_lshlrev_b32 v54, 16, v2
        v_and_b32 v55, 0xffff0000, v2""")
        if rep == 0:
            for i in range(4):
                g(f"v_mul_f32 v{52+i}, {SCALE:#x}, v{52+i}")
    g("""v_max3_f32 v1, v52, v53, v54
    v_max_f32 v1, v1, v55""")
    allreduce_rows(g, 1, 2, "v_max_f32")
    g("""s_mov_b64 exec, 15
    ds_write_b32 v65, v1""")
    g.signal(3)
    g.wait([(0xff0, 3)])
    g("""ds_read_b128 v[20:23], v64
    ds_read_b128 v[24:27], v64 offset:16
    s_waitcnt lgkmcnt(0)
    v_max3_f32 v1, v20, v21, v22
    v_max3_f32 v2, v23, v24, v25
    v_max3_f32 v1, v1, v26, v27
    v_max_f32 v68, v1, v2""")
    for i in range(4):
        g(f"v_sub_f32 v{52+i}, v{52+i}, v68")
    for i in range(4):
        g(f"v_mul_f32 v{52+i}, {LOG2E:#x}, v{52+i}")
    for i in range(4):
        g(f"v_exp_f32 v{52+i}, v{52+i}")
    g("""s_nop 0
    v_cvt_pk_bf16_f32 v2, v52, v53
    v_cvt_pk_bf16_f32 v3, v54, v55
    v_add_f32 v1, v52, v53
    v_add_f32 v4, v54, v55
    v_add_f32 v1, v1, v4
    s_mov_b64 exec, s[46:47]
    ds_write_b64 v66, v[2:3]
    s_mov_b64 exec, -1""")
    allreduce_rows(g, 1, 4, "v_add_f32")
    g("""s_mov_b64 exec, 15
    ds_write_b32 v65, v1 offset:128""")
    g.signal(4)
    g.stamp(8)
    g(f"""s_cmp_lt_u32 s43, 4
    s_cbranch_scc1 L_noh
    s_cmp_ge_u32 s31, 28
    s_cbranch_scc1 L_noh
    s_lshl_b32 s44, s31, 2
    s_add_u32 s44, s44, s60
    s_lshl_b32 s44, s44, 11
    s_add_u32 s44, s44, {W_HP}
    v_lshl_add_u32 v17, v0, 4, s44
    buffer_load_dwordx4 v[56:59], v17, s[32:35], 0 offen sc1
    buffer_load_dwordx4 v[60:63], v17, s[32:35], 0 offen offset:1024 sc1
    L_noh:
    s_mul_i32 s44, s30, {16*8*640}
    s_mul_i32 s63, s61, {8*640}
    s_add_u32 s44, s44, s63
    s_mul_i32 s63, s62, 640
    s_add_u32 s44, s44, s63
    s_add_u32 s44, s44, {W_OP}
    s_movk_i32 s63, {4*8*640}
    v_mad_u32_u24 v15, v14, s63, v13
    v_add_u32 v15, s44, v15
    s_lshl_b32 s50, s43, 6
    v_add_u32 v16, {L_P}, v76""")
    g.wait([(0xff0, 4)])
    for m in range(4):
        g(f"ds_read_b128 v[{36+4*m}:{39+4*m}], v16 offset:{64*m}")
    g("""ds_read_b128 v[20:23], v64 offset:128
    ds_read_b128 v[24:27], v64 offset:144
    s_waitcnt lgkmcnt(0)
    v_add_f32 v20, v20, v21
    v_add_f32 v22, v22, v23
    v_add_f32 v24, v24, v25
    v_add_f32 v26, v26, v27
    v_add_f32 v20, v20, v22
    v_add_f32 v24, v24, v26
    v_add_f32 v69, v20, v24
    v_mov_b32 v70, s40
    v_mov_b32 v71, s40""")
    g.pad()
    g.wait([(0x00f, 4)])
    g.stamp(9)
    for m in range(4):
        g(f"ds_read_b64_tr_b16 v[{20+4*m}:{21+4*m}], v75 offset:{8192*m}")
        g(f"ds_read_b64_tr_b16 v[{22+4*m}:{23+4*m}], v75 offset:{8192*m+1024}")
    for m in range(4):
        g(f"s_waitcnt lgkmcnt({2*(3-m)})")
        c = "0" if m == 0 else "v[52:55]"
        g(f"v_mfma_f32_16x16x32_bf16 v[52:55], v[{20+4*m}:{23+4*m}], v[{36+4*m}:{39+4*m}], {c}")
    g.publish(15, "s50")
    g("""s_cmp_ge_u32 s43, 4
    s_cbranch_scc1 L_s3b
    s_cmp_lg_u32 s43, 0
    s_cbranch_scc1 L_noml
    s_mov_b64 exec, s[46:47]
    buffer_store_dwordx4 v[68:71], v15, s[32:35], 0 offen offset:512 sc1
    s_mov_b64 exec, -1
    L_noml:""")
    g(f"""s_lshl_b32 s44, s30, 2
    s_add_u32 s51, s44, s61
    s_lshl_b32 s44, s51, 2
    s_add_u32 s44, s44, s43
    s_mul_i32 s44, s44, {8*640}
    s_add_u32 s44, s44, {W_OP}
    v_lshrrev_b32 v1, 5, v0
    v_and_b32 v2, 31, v0
    v_lshlrev_b32 v3, 4, v2
    s_movk_i32 s63, 640
    v_mad_u32_u24 v15, v1, s63, v3
    v_add_u32 v15, s44, v15
    s_add_u32 s48, s32, s44
    s_addc_u32 s49, s33, 0
    s_mul_i32 s44, s43, 320
    s_add_u32 s44, s44, {L_O}
    v_lshlrev_b32 v2, 3, v2
    v_lshlrev_b32 v1, 2, v1
    v_add3_u32 v17, v1, v2, s44
    s_lshl_b32 s44, s62, 16
    s_lshl_b32 s63, s51, 8
    s_add_u32 s44, s44, s63
    s_lshl_b32 s63, s43, 6
    s_add_u32 s44, s44, s63
    s_add_u32 s44, s44, {W_SP}
    v_lshl_add_u32 v19, v14, 14, v13
    v_add_u32 v19, s44, v19
    v_add_u32 v16, {L_O}, v76
    v_add_u32 v18, {L_WO}, v18
    s_mov_b32 s52, 0
    s_mov_b32 s53, -1
    L_oh:""")
    hs = [8, 12, 28, 56, 64, 68, 72, 76]
    for sp in range(8):
        g(f"s_load_dwordx4 s[{hs[sp]}:{hs[sp]+3}], s[48:49], {640*sp+512} glc")
    g("s_waitcnt lgkmcnt(0)")
    for sp in range(8):
        g(f"s_cmp_lg_u32 s{hs[sp]+2}, s40")
        g("s_cbranch_scc1 L_oh_r")
    g.retry.append(("L_oh_r", "L_oh"))
    g.stamp(6)
    g("L_op:")
    for n_ in range(4):
        g(f"buffer_load_dwordx4 v[{56+4*n_}:{59+4*n_}], v15, s[32:35], 0 offen offset:{1280*n_} sc1")
    g.pad()
    g(f"v_mov_b32 v1, s{hs[0]}")
    for sp in range(1, 8):
        g(f"v_max_f32 v1, s{hs[sp]}, v1")
    for sp in range(8):
        g(f"v_sub_f32 v{20+sp}, s{hs[sp]}, v1")
    for sp in range(8):
        g(f"v_mul_f32 v{20+sp}, {LOG2E:#x}, v{20+sp}")
    for sp in range(8):
        g(f"v_exp_f32 v{20+sp}, v{20+sp}")
    g(f"v_mul_f32 v1, s{hs[0]+1}, v20")
    for sp in range(1, 8):
        g(f"v_fmac_f32 v1, s{hs[sp]+1}, v{20+sp}")
    g("v_rcp_f32 v1, v1")
    for n_ in range(4):
        g(f"v_cndmask_b32 v{20+n_}, v{20+2*n_}, v{21+2*n_}, s[52:53]")
    for n_ in range(4):
        g(f"v_mul_f32 v{20+n_}, v{20+n_}, v1")
    for n_ in range(4):
        g(f"s_waitcnt vmcnt({3-n_})")
        d = 56 + 4 * n_
        g.tagcheck(d, 1, 2, "vcc" if n_ == 0 else "s[54:55]")
        for i in range(4):
            g(f"v_mul_f32 v{52+i}, v20, v{d+i}" if n_ == 0 else f"v_fmac_f32 v{52+i}, v{20+n_}, v{d+i}")
        if n_:
            g("s_and_b64 vcc, vcc, s[54:55]")
    g("""s_cmp_eq_u64 vcc, exec
    s_cbranch_scc0 L_op_r""")
    g.retry.append(("L_op_r", "L_op"))
    g.stamp(7)
    g("""v_permlane32_swap_b32 v52, v54
    v_permlane32_swap_b32 v53, v55
    v_add_f32 v52, v52, v54
    v_add_f32 v53, v53, v55
    v_cvt_pk_bf16_f32 v52, v52, v53
    ds_write_b32 v17, v52
    s_waitcnt lgkmcnt(0)
    s_barrier""")
    g.gemv(4, 16, 18, 4096, 512)
    g.publish(19)
    g.stamp(10)
    if o.diag:
        g("s_branch L_diag")
    else:
        g("s_endpgm")
    g("L_s3b:")
    g.pad()
    g(f"""s_lshl_b32 s44, s30, 16
    s_lshl_b32 s63, s31, 8
    s_add_u32 s44, s44, s63
    s_lshl_b32 s63, s60, 6
    s_add_u32 s44, s44, s63
    s_add_u32 s44, s44, {W_SP + 32*256}
    v_lshl_add_u32 v15, v14, 14, v13
    v_add_u32 v15, s44, v15
    s_movk_i32 s63, 192
    v_mad_u32_u24 v16, v14, s63, v13
    v_add_u32 v16, {L_H}, v16
    v_add_u32 v18, {L_W2}, v18
    s_mul_i32 s44, s60, 192
    s_add_u32 s44, s44, {L_H}
    v_and_b32 v1, 15, v0
    v_lshlrev_b32 v1, 3, v1
    v_lshrrev_b32 v2, 3, v13
    v_add3_u32 v64, v1, v2, s44
    s_lshl_b32 s44, s30, 2
    s_add_u32 s44, s44, s61
    s_lshl_b32 s44, s44, 14
    s_lshl_b32 s63, s62, 5
    s_add_u32 s44, s44, s63
    s_and_b32 s63, s43, 1
    s_lshl_b32 s63, s63, 4
    s_add_u32 s44, s44, s63
    s_add_u32 s44, s44, {W_SP}
    v_lshl_add_u32 v65, v0, 8, s44
    s_cmp_ge_u32 s31, 28
    s_cbranch_scc1 L_nffn
    s_waitcnt vmcnt(1)
    L_hp2:""")
    g.tagcheck(56, 1, 2)
    g.tagcheck(60, 1, 2, "s[54:55]")
    g("""s_and_b64 vcc, vcc, s[54:55]
    s_cmp_eq_u64 vcc, exec
    s_cbranch_scc0 L_hp_r""")
    g.stamp(6)
    for i in range(4):
        g(f"v_add_f32 v{56+i}, v{56+i}, v{60+i}")
    g("""s_nop 1
    v_permlane32_swap_b32 v56, v58
    v_permlane32_swap_b32 v57, v59
    v_add_f32 v56, v56, v58
    v_add_f32 v57, v57, v59
    v_lshlrev_b32 v77, 16, v77
    s_nop 0
    v_permlane16_swap_b32 v56, v57
    v_add_f32 v56, v56, v57""")
    bf16r(g, 56, 56)
    g("v_add_f32 v56, v56, v77")
    bf16r(g, 56, 56)
    g("""v_max_f32 v56, 0, v56
    v_mul_f32 v56, v56, v56
    v_cvt_pk_bf16_f32 v56, v56, v56
    ds_write_b16 v64, v56
    s_waitcnt lgkmcnt(0)
    s_barrier""")
    g.stamp(7)
    g.gemv(2, 16, 18, 4096, 512)
    g.publish(15)
    g("""s_branch L_fin
    L_hp_r:
    buffer_load_dwordx4 v[56:59], v17, s[32:35], 0 offen sc1
    buffer_load_dwordx4 v[60:63], v17, s[32:35], 0 offen offset:1024 sc1
    s_waitcnt vmcnt(0)
    s_sub_u32 s42, s42, 1
    s_cbranch_scc0 L_hp2
    s_endpgm
    L_nffn:
    s_barrier
    L_fin:""")
    g.pad()
    g("""s_cmp_lt_u32 s43, 6""")
    g("s_cbranch_scc1 " + ("L_diag" if o.diag else "L_end2"))
    g("""v_mov_b32 v56, 0
    v_mov_b32 v57, 0
    v_mov_b32 v58, 0
    v_mov_b32 v59, 0
    v_lshlrev_b32 v78, 16, v78
    v_lshlrev_b32 v79, 16, v79
    v_and_b32 v1, 1, v0
    v_cmp_eq_u32 s[54:55], 1, v1
    s_mov_b32 exec_lo, -1
    s_mov_b32 exec_hi, 0x0fffffff
    L_fp:
    buffer_load_dwordx4 v[56:59], v65, s[32:35], 0 offen sc1
    s_waitcnt vmcnt(0)""")
    g.tagcheck(56, 1, 2)
    g("""s_andn2_b64 exec, exec, vcc
    s_cbranch_scc1 L_fp_r
    s_mov_b64 exec, -1""")
    g.retry.append(("L_fp_r", "L_fp"))
    g.stamp(5)
    g("""v_permlane16_swap_b32 v56, v57
    v_permlane16_swap_b32 v58, v59
    v_add_f32 v56, v56, v57
    v_add_f32 v58, v58, v59""")
    for r in (8, 4, 2, 1):
        g("s_nop 0")
        g(f"v_add_f32_dpp v56, v56, v56 row_ror:{r} row_mask:0xf bank_mask:0xf")
        g(f"v_add_f32_dpp v58, v58, v58 row_ror:{r} row_mask:0xf bank_mask:0xf")
    g("""v_cndmask_b32 v56, v56, v58, s[54:55]
    v_mov_b32 v57, v56
    s_nop 1
    v_permlane32_swap_b32 v56, v57""")
    bf16r(g, 57, 57)
    bf16r(g, 56, 56)
    g("v_add_f32 v57, v57, v78")
    bf16r(g, 57, 57)
    g(f"""v_mul_f32 v1, {LOG2E | 0x80000000:#x}, v57
    v_exp_f32 v1, v1
    s_nop 0
    v_add_f32 v1, 1.0, v1
    v_rcp_f32 v1, v1
    s_nop 0
    v_mul_f32 v57, v57, v1""")
    bf16r(g, 57, 57)
    g("v_mul_f32 v56, v56, v57")
    bf16r(g, 56, 56)
    g("""v_add_f32 v56, v56, v79
    v_cvt_pk_bf16_f32 v56, v56, v56
    s_mov_b64 exec, 0x30003
    global_store_short v19, v56, s[24:25]
    s_cmp_lg_u32 s2, 0
    s_cbranch_scc1 L_end3
    s_cmp_lg_u32 s43, 6
    s_cbranch_scc1 L_end3
    v_mov_b32 v1, 0
    v_mov_b32 v2, s40
    s_mov_b64 exec, 1
    buffer_store_dword v2, v1, s[32:35], 0 offen sc1
    L_end3:""")
    g.stamp(10)
    if o.diag:
        g("L_diag:")
        g("s_mov_b64 exec, 1")
        g("s_waitcnt lgkmcnt(0)")
        g(f"""s_mul_i32 s44, s2, 12
        s_add_u32 s44, s44, s3
        s_lshl_b32 s44, s44, 6
        s_add_u32 s44, s44, {W_ST}
        v_mov_b32 v1, s44""")
        for k in range(11):
            g(f"v_mov_b32 v2, s{80+2*k}")
            g(f"buffer_store_dword v2, v1, s[32:35], 0 offen offset:{4*k}")
    g("L_end2:")
    g("s_endpgm")
    while g.npad < 8:
        g.pad()
        g("s_endpgm")
    for r, l in g.retry:
        g(f"""{r}:
        s_sub_u32 s42, s42, 1
        s_cbranch_scc0 {l}
        s_endpgm""")
    body = "\n".join(g.L)
    return HEADER + f"""; @launch grid=(256,1,1) block=(768,1,1) lds={LDS_BYTES}
.amdgcn_target "amdgcn-amd-amdhsa--gfx950"
.text
.globl {KN}
.p2align 8
.type {KN},@function
{KN}:
{body}
.section .rodata,"a"
.p2align 6
.amdhsa_kernel {KN}
  .amdhsa_next_free_vgpr 80
  .amdhsa_next_free_sgpr 102
  .amdhsa_accum_offset 80
  .amdhsa_group_segment_fixed_size 0
  .amdhsa_kernarg_size 104
  .amdhsa_user_sgpr_count 2
  .amdhsa_user_sgpr_kernarg_segment_ptr 1
  .amdhsa_system_sgpr_workgroup_id_x 1
.end_amdhsa_kernel
"""


def parse(argv):
    ap = argparse.ArgumentParser()
    ap.add_argument("-o", default="k.s")
    ap.add_argument("--diag", action="store_true")
    ap.add_argument("--win", type=int, default=8)
    ap.add_argument("--nt", default="nt")
    ap.add_argument("--xnt", default="")
    ap.add_argument("--lprio", type=int, default=3)
    ap.add_argument("--spin", type=int, default=0x40000)
    return ap.parse_args(argv)


if __name__ == "__main__":
    o = parse(sys.argv[1:])
    open(o.o, "w").write(build(o))
```

```python
import sys, argparse

KN = "recurrent_scan__sliding_block_cached__dense_activation_squared_relu__decode_kernel"

L_WQ, L_W1, L_K, L_V, L_WO, L_W2 = 0, 16384, 24576, 57344, 90112, 106496
L_XN = 114688
L_Q = L_XN + 4352
L_P = L_Q + 1280
L_O = L_P + 1280
L_H = L_O + 1280
L_MX = L_H + 768
L_LS = L_MX + 128
L_SY = L_LS + 128
L_R = L_SY + 64
LDS_BYTES = L_R + 1024
W_QP, W_HP, W_OP, W_SP = 0x10000, 0x50000, 0x90000, 0x110000
W_QH, W_MH, W_FH = 0x190000, 0x200000, 0x1D0000
W_ST = 0x400000
WS_REC = 0x800000
LOG2E = 0x3FB8AA3B
SCALE = 0x3DB504F3
LCG_A, LCG_C = 1664525, 1013904223

HEADER = open("recurrent_scan__sliding_block_cached__dense_activation_squared_relu__decode.s.ref").read().split("; Override launch")[0]


class G:
    def __init__(s, opt):
        s.L = []
        s.o = opt
        s.nl = 0
        s.npad = 0
        s.cw = False

    def __call__(s, x):
        for ln in x.strip("\n").split("\n"):
            ln = ln.strip()
            if ln:
                s.L.append(ln if ln.endswith(":") else "    " + ln)

    def lab(s, p="L"):
        s.nl += 1
        return f"{p}{s.nl}"

    def stamp(s, k):
        if s.o.diag and not (s.o.qdiag and 6 <= k <= 9 and s.cw):
            s(f"s_memrealtime s[{80+2*k}:{81+2*k}]")

    def pad(s):
        s.npad += 1
        k = s.npad
        s(f"L_pad{k}:")
        s(f"s_cbranch_execz {'L_mid' if k <= 4 else 'L_warm_done'}")

    def tmo(s):
        s("s_sub_u32 s42, s42, 1")
        s("s_cbranch_scc1 L_bail")

    def signal(s, ph, restore=True):
        s(f"""v_mov_b32 v9, {ph}
        s_mov_b64 exec, 1
        ds_write_b32 v12, v9""")
        if restore:
            s("s_mov_b64 exec, -1")

    def wait(s, mask, ph):
        l = s.lab("L_w")
        s(f"s_mov_b64 exec, {mask:#x}")
        s(f"{l}:")
        s("ds_read_b32 v9, v11")
        s.tmo()
        s(f"""s_waitcnt lgkmcnt(0)
        v_cmp_gt_u32 vcc, {ph}, v9
        s_cbranch_vccnz {l}
        s_mov_b64 exec, -1""")

    def tagcheck(s, d, t0, t1, dst="vcc"):
        s(f"""v_perm_b32 v{t0}, v{d+1}, v{d}, s41
        v_perm_b32 v{t1}, v{d+3}, v{d+2}, s41
        v_lshl_or_b32 v{t0}, v{t1}, 16, v{t0}
        v_cmp_ne_u32 {dst}, s40, v{t0}""")

    def embed(s, d):
        for i in range(4):
            s(f"v_and_or_b32 v{d+i}, v{d+i}, v10, s{36+i}")

    def gemv(s, nstep, vact, vtr, tr_step, tr_half, extra=(), pre=False):
        if pre:
            for m in range(nstep):
                s(f"ds_read_b128 v[{36+4*m}:{39+4*m}], v{vact} offset:{64*m}")
            for m in range(nstep):
                s(f"s_waitcnt lgkmcnt({nstep-1-m})")
                c = "0" if m == 0 else "v[52:55]"
                s(f"v_mfma_f32_16x16x32_bf16 v[52:55], v[{20+4*m}:{23+4*m}], v[{36+4*m}:{39+4*m}], {c}")
            return
        for m in range(nstep):
            s(f"ds_read_b128 v[{36+4*m}:{39+4*m}], v{vact} offset:{64*m}")
            s(f"ds_read_b64_tr_b16 v[{20+4*m}:{21+4*m}], v{vtr} offset:{tr_step*m}")
            s(f"ds_read_b64_tr_b16 v[{22+4*m}:{23+4*m}], v{vtr} offset:{tr_step*m+tr_half}")
        for e in extra:
            s(e)
        for m in range(nstep):
            s(f"s_waitcnt lgkmcnt({3*(nstep-1-m)+len(extra)})")
            c = "0" if m == 0 else "v[52:55]"
            s(f"v_mfma_f32_16x16x32_bf16 v[52:55], v[{20+4*m}:{23+4*m}], v[{36+4*m}:{39+4*m}], {c}")

    def trpre(s, nstep, vtr):
        for m in range(nstep):
            s(f"ds_read_b64_tr_b16 v[{20+4*m}:{21+4*m}], v{vtr} offset:{4096*m}")
            s(f"ds_read_b64_tr_b16 v[{22+4*m}:{23+4*m}], v{vtr} offset:{4096*m+512}")

    def publish(s, voff, soff="0", restore=True):
        s("s_mov_b64 exec, s[46:47]")
        s("s_nop 6")
        s.embed(52)
        s(f"buffer_store_dwordx4 v[52:55], v{voff}, s[32:35], {soff} offen sc1")
        if restore:
            s("s_mov_b64 exec, -1")


def bf16r(g, dst, src):
    g(f"v_cvt_pk_bf16_f32 v{dst}, v{src}, v{src}")
    g(f"v_lshlrev_b32 v{dst}, 16, v{dst}")


def allreduce_rows(g, v, t, op):
    g(f"""v_mov_b32 v{t}, v{v}
    s_nop 1
    v_permlane16_swap_b32 v{v}, v{t}
    {op} v{v}, v{v}, v{t}
    v_mov_b32 v{t}, v{v}
    s_nop 1
    v_permlane32_swap_b32 v{v}, v{t}
    {op} v{v}, v{v}, v{t}""")


def allreduce64(g, v, t):
    for r in (8, 4, 2, 1):
        g("s_nop 1")
        g(f"v_add_f32_dpp v{v}, v{v}, v{v} row_ror:{r} row_mask:0xf bank_mask:0xf")
    allreduce_rows(g, v, t, "v_add_f32")


def rowsum4(g, d):
    g(f"""v_permlane32_swap_b32 v{d}, v{d+2}
    v_permlane32_swap_b32 v{d+1}, v{d+3}
    v_add_f32 v{d}, v{d}, v{d+2}
    v_add_f32 v{d+1}, v{d+1}, v{d+3}
    s_nop 1
    v_permlane16_swap_b32 v{d}, v{d+1}
    v_add_f32 v{d}, v{d}, v{d+1}""")


def build(o):
    g = G(o)
    W = o.win
    nt = o.nt
    tagsetup = f"""s_mul_i32 s40, s45, {LCG_A}
    s_add_u32 s40, s40, {LCG_C}
    s_and_b32 s36, s40, 0xff
    s_bfe_u32 s37, s40, 0x80008
    s_bfe_u32 s38, s40, 0x80010
    s_lshr_b32 s39, s40, 24
    s_mov_b32 s50, s40
    s_mov_b32 s51, s40
    v_mov_b32 v70, s40
    v_mov_b32 v71, s40"""
    END = "s_branch L_diag" if o.diag else "s_endpgm"
    g.stamp(0)
    g(f"""s_load_dwordx2 s[36:37], s[0:1], 24
    s_load_dwordx16 s[4:19], s[0:1], 0
    s_load_dwordx2 s[32:33], s[0:1], 96
    v_lshrrev_b32 v1, 6, v0
    s_cmpk_ge_u32 s2, 0x100
    s_cbranch_scc1 L_bail
    v_readfirstlane_b32 s3, v1
    v_and_b32 v0, 63, v0
    s_and_b32 s30, s2, 7
    s_cmp_ge_u32 s3, 8
    s_cbranch_scc1 L_warm
    s_cmp_lt_u32 s3, 4
    s_cbranch_scc1 L_ld1
    s_lshl_b32 s44, s3, 10
    v_lshl_add_u32 v1, v0, 4, s44
    s_waitcnt lgkmcnt(0)
    global_load_dwordx4 v[20:23], v1, s[4:5] offset:-4096 {o.xnt}
    s_branch L_ln_entry
    L_ld1:
    v_lshrrev_b32 v1, 3, v0
    v_and_b32 v2, 7, v0
    v_lshrrev_b32 v3, 3, v0
    v_and_b32 v3, 2, v3
    s_and_b32 s43, s3, 1
    s_lshl_b32 s43, s43, 2
    v_or_b32 v3, s43, v3
    v_xor_b32 v2, v2, v3
    v_lshlrev_b32 v2, 4, v2
    v_lshl_add_u32 v4, v1, 13, v2
    s_lshr_b32 s50, s2, 6
    s_lshl_b32 s50, s50, 20
    s_and_b32 s45, s2, 56
    s_lshl4_add_u32 s50, s45, s50
    s_lshl_b32 s45, s30, 10
    s_add_u32 s50, s50, s45
    s_lshl_b32 s45, s3, 16
    s_add_u32 s50, s50, s45
    s_lshl_b32 s51, 1, 18
    s_lshl_b32 m0, s3, 10
    s_lshl_b32 s38, 1, 22
    s_lshl_b32 s39, 1, 17
    s_waitcnt lgkmcnt(0)""")
    g.stamp(1)
    for t in range(4):
        g(f"buffer_load_dwordx4 v4, s[36:39], s50 offen {nt} lds")
        g("s_addk_i32 m0, 0x1000")
        if t < 3:
            g("s_add_u32 s50, s50, s51")
    g("s_barrier")
    g("s_branch L_ld2")
    g("""L_warm:
    s_load_dwordx8 s[20:27], s[0:1], 64
    s_nop 0
    s_barrier
    s_mov_b64 exec, 0
    s_cmp_eq_u32 s3, 8
    s_cbranch_scc1 L_pad1
    s_cmp_eq_u32 s3, 9
    s_cbranch_scc1 L_pad2
    s_cmp_eq_u32 s3, 10
    s_cbranch_scc1 L_pad3
    s_branch L_pad4
    L_mid:
    s_cmp_eq_u32 s3, 8
    s_cbranch_scc1 L_pad5
    s_cmp_eq_u32 s3, 9
    s_cbranch_scc1 L_pad6
    s_cmp_eq_u32 s3, 10
    s_cbranch_scc1 L_pad7
    s_branch L_pad8
    L_warm_done:
    s_mov_b64 exec, -1
    s_waitcnt lgkmcnt(0)
    s_load_dword s45, s[32:33], 0
    s_branch L_P
    L_bail:
    s_endpgm""")
    g(f"""L_ld2:
    s_setprio {o.lprio}
    s_load_dwordx2 s[20:21], s[0:1], 64
    s_lshl_b32 s44, s2, 3
    s_add_u32 s44, s44, s3
    s_lshl_b32 s44, s44, 7
    s_add_u32 s44, s44, {W_QH}
    s_add_u32 s60, s32, s44
    s_addc_u32 s61, s33, 0
    s_load_dword s64, s[60:61], 0 glc
    s_load_dword s65, s[60:61], 512 glc
    s_lshr_b32 s31, s2, 3
    s_movk_i32 s43, 3584
    v_mul_u32_u24 v5, s43, v1
    v_add_u32 v5, v5, v2
    s_mul_i32 s44, s30, 229376
    s_lshl_b32 s46, s31, 7
    s_add_u32 s44, s44, s46
    s_mul_i32 s46, s3, 28672
    s_add_u32 s52, s44, s46
    s_cmp_lt_u32 s31, 28
    s_cselect_b32 s57, 1835008, 0
    s_mov_b32 s58, 114688""")
    setup = {
        2: f"""v_lshl_add_u32 v6, v1, 10, v2
    v_lshrrev_b32 v1, 4, v0
    v_and_b32 v2, 15, v0
    s_lshl_b32 s43, s3, 2
    v_or_b32 v3, s43, v1
    v_xor_b32 v3, v2, v3
    v_lshlrev_b32 v3, 4, v3
    v_lshl_add_u32 v7, v1, 8, v3
    s_and_b32 s44, s31, 3
    s_lshl_b32 s46, s44, 3
    s_add_u32 s46, s46, s30
    s_lshl_b32 s46, s46, 20
    s_lshr_b32 s47, s31, 2
    s_lshl_b32 s48, s47, 15
    s_add_u32 s46, s46, s48
    s_lshl_b32 s45, s3, 10
    s_add_u32 s46, s46, s45
    s_add_u32 s53, s46, 786432
    s_mov_b32 s54, s53""",
    }
    late = f"""s_lshr_b32 s43, s3, 1
    s_lshl_b32 s43, s43, 2
    v_or_b32 v3, s43, v1
    v_lshlrev_b32 v3, 1, v3
    v_xor_b32 v3, v2, v3
    v_lshlrev_b32 v3, 4, v3
    v_lshl_add_u32 v8, v1, 8, v3
    s_lshl_b32 s46, s30, 2
    s_add_u32 s46, s46, s44
    s_lshl_b32 s46, s46, 17
    s_lshl_b32 s47, s47, 7
    s_add_u32 s46, s46, s47
    s_lshl_b32 s48, s3, 13
    s_add_u32 s55, s46, s48
    s_lshl_b32 s46, s31, 16
    s_lshl_b32 s47, s30, 7
    s_add_u32 s46, s46, s47
    s_add_u32 s56, s46, s48
    s_mov_b32 s59, 0x8000
    s_lshl_b32 s44, s3, 2
    s_add_u32 s44, s44, {L_SY}
    v_mov_b32 v12, s44
    s_mov_b32 s34, {WS_REC:#x}
    s_mov_b32 s35, 0x20000
    s_lshl_b32 s44, s2, 10
    s_lshl_b32 s46, s3, 8
    s_add_u32 s44, s44, s46
    s_add_u32 s44, s44, {W_MH}
    s_add_u32 s60, s32, s44
    s_addc_u32 s61, s33, 0
    s_load_dword s66, s[60:61], 0 glc
    s_load_dword s67, s[60:61], 128 glc
    s_cmp_lt_u32 s31, 28
    s_cbranch_scc1 L_nft
    s_and_b32 s44, s31, 3
    s_lshl2_add_u32 s44, s30, s44
    s_lshl2_add_u32 s44, s44, s3
    s_lshl_b32 s44, s44, 9
    s_add_u32 s44, s44, {W_FH}
    s_add_u32 s60, s32, s44
    s_addc_u32 s61, s33, 0
    s_load_dword s68, s[60:61], 0 glc
    s_load_dword s69, s[60:61], 128 glc
    s_load_dword s70, s[60:61], 256 glc
    s_load_dword s71, s[60:61], 384 glc
    L_nft:"""
    phases = [None, ("v5", 16, "s57", 52, "s58", 2), ("v7", 6, "0x2000000", 53, 4096, 8),
              ("v8", 8, None, 54, 4096, 8), ("v6", 12, "0x400000", 55, "s59", 4), ("v6", 20, "s57", 56, "s59", 2)]
    ends = [3, 5, o.pace or 12, 13]
    n = 4
    flagged = 0
    assert 6 <= W <= 13

    def flag_upto(done_idx):
        nonlocal flagged
        ph = flagged
        while ph < 4 and ends[ph] <= done_idx:
            ph += 1
        if ph > flagged:
            flagged = ph
            if ph != 3:
                g.stamp(1 + min(ph, 3))
            g.signal(ph)

    for pi in range(1, 6):
        (va, base, size, so, step, cnt) = phases[pi]
        if pi in setup:
            g(setup[pi])
        if pi == 5:
            g("s_waitcnt lgkmcnt(0)")
        g(f"s_mov_b32 s36, s{base}")
        g(f"s_mov_b32 s37, s{base+1}")
        if size is not None:
            g(f"s_mov_b32 s38, {size}")
        for t in range(cnt):
            if n == W:
                g(late)
            if n >= W:
                g(f"s_waitcnt vmcnt({W-1})")
                flag_upto(n - W)
            g(f"buffer_load_dwordx4 {va}, s[36:39], s{so} offen {nt} lds")
            g("s_addk_i32 m0, 0x1000")
            if t + 1 < cnt:
                g(f"s_addk_i32 s{so}, {step}" if isinstance(step, int) else f"s_add_u32 s{so}, s{so}, {step}")
            n += 1
    assert flagged == 4
    g("s_waitcnt vmcnt(6)")
    g.stamp(5)
    g("s_barrier")
    g("s_waitcnt vmcnt(0)")
    g.stamp(6)
    g("s_barrier")
    g(END)

    g.cw = True
    g(f"""L_ln_entry:
    v_and_b32 v1, 15, v0
    v_lshlrev_b32 v1, 2, v1
    v_add_u32 v11, {L_SY}, v1
    v_mov_b32 v2, 0
    ds_write_b32 v11, v2
    s_waitcnt lgkmcnt(0)
    s_barrier
    s_load_dword s45, s[32:33], 0
    s_load_dwordx8 s[20:27], s[0:1], 64
    L_P:""")
    g.stamp(1)
    g(f"""s_sub_u32 s43, s3, 4
    s_setprio {o.cprio}
    s_lshr_b32 s31, s2, 3
    s_lshl_b32 s44, s2, 3
    s_add_u32 s44, s44, s43
    s_lshl_b32 s44, s44, 7
    s_add_u32 s44, s44, {W_QH}
    s_add_u32 s48, s32, s44
    s_addc_u32 s49, s33, 0
    s_and_b32 s60, s43, 3
    s_and_b32 s61, s31, 3
    s_lshl_b32 s44, s2, 10
    s_lshl_b32 s63, s43, 8
    s_add_u32 s44, s44, s63
    s_add_u32 s44, s44, {W_MH}
    s_lshl_b32 s63, s30, 2
    s_add_u32 s63, s63, s61
    s_lshl_b32 s63, s63, 11
    s_lshl_b32 s65, s60, 9
    s_add_u32 s63, s63, s65
    s_add_u32 s63, s63, {W_FH}
    s_cmp_lt_u32 s43, 4
    s_cselect_b32 s44, s44, s63
    s_add_u32 s58, s32, s44
    s_addc_u32 s59, s33, 0
    s_mov_b32 s34, {WS_REC:#x}
    s_mov_b32 s35, 0x20000
    s_mov_b32 s42, {o.spin:#x}
    v_mov_b32 v10, 0xffffff00
    v_and_b32 v1, 15, v0
    v_lshlrev_b32 v2, 2, v1
    v_add_u32 v11, {L_SY}, v2
    s_lshl_b32 s44, s3, 2
    s_add_u32 s44, s44, {L_SY}
    v_mov_b32 v12, s44
    v_lshrrev_b32 v13, 4, v0
    v_and_b32 v14, 3, v0
    s_mov_b32 s46, 0x000f000f
    s_mov_b32 s47, 0x000f000f
    s_mov_b32 s41, 0x0c0c0400
    s_lshr_b32 s62, s31, 2
    v_bfe_u32 v2, v0, 2, 2
    v_lshrrev_b32 v3, 1, v2
    v_and_b32 v4, 1, v13
    v_lshl_or_b32 v3, v4, 1, v3
    v_lshlrev_b32 v3, 1, v3
    v_lshrrev_b32 v5, 1, v14
    s_lshl_b32 s44, s60, 1
    v_or_b32 v5, s44, v5
    v_xor_b32 v3, v3, v5
    v_lshlrev_b32 v3, 4, v3
    v_and_b32 v6, 1, v0
    v_lshl_or_b32 v3, v6, 3, v3
    v_lshl_add_u32 v7, v13, 3, v2
    v_lshl_add_u32 v18, v7, 7, v3
    v_lshl_or_b32 v3, v4, 2, v2
    v_lshlrev_b32 v3, 1, v3
    v_lshrrev_b32 v5, 1, v14
    s_lshl_b32 s44, s43, 1
    v_or_b32 v5, s44, v5
    v_xor_b32 v3, v3, v5
    v_lshlrev_b32 v3, 4, v3
    v_lshl_or_b32 v3, v6, 3, v3
    v_lshl_add_u32 v3, v7, 8, v3
    v_add_u32 v75, {L_V}, v3
    v_lshlrev_b32 v1, 3, v1
    v_lshl_add_u32 v74, v13, 1, v1
    v_lshlrev_b32 v13, 4, v13
    s_movk_i32 s44, 320
    v_mad_u32_u24 v76, v14, s44, v13
    s_cmp_ge_u32 s43, 4
    s_cbranch_scc1 L_s1b""")
    g(f"""s_lshr_b32 s44, s31, 3
    s_lshl_b32 s64, s44, 2
    s_lshl_b32 s44, s44, 8
    s_add_u32 s63, s44, {L_XN}
    s_movk_i32 s65, 1088
    v_mad_u32_u24 v16, v14, s65, v13
    v_add_u32 v16, s63, v16
    s_mul_i32 s63, s43, 1088
    s_add_u32 s63, s63, {L_XN}
    v_lshl_add_u32 v17, v0, 4, s63
    s_lshl_b32 s63, s30, 15
    s_add_u32 s44, s44, s63
    s_and_b32 s65, s31, 7
    s_lshl_b32 s63, s65, 10
    s_add_u32 s44, s44, s63
    s_lshl_b32 s63, s60, 6
    s_add_u32 s44, s44, s63
    s_add_u32 s44, s44, {W_QP}
    v_lshl_add_u32 v15, v14, 13, v13
    v_add_u32 v15, s44, v15
    s_lshl_b32 s44, s30, 3
    s_add_u32 s44, s44, s65
    s_lshl_b32 s44, s44, 7
    s_add_u32 s44, s44, s64
    s_add_u32 s44, s44, {W_QH}
    v_lshl_add_u32 v19, v0, 13, s44
    s_lshl_b32 s63, s43, 16
    s_add_u32 s44, s44, s63
    s_add_u32 s56, s32, s44
    s_addc_u32 s57, s33, 0
    s_waitcnt lgkmcnt(0)""")
    g(tagsetup)
    g("s_waitcnt vmcnt(0)")
    for i in range(4):
        g(f"v_lshlrev_b32 v{24+2*i}, 16, v{20+i}")
        g(f"v_and_b32 v{25+2*i}, 0xffff0000, v{20+i}")
    g("""v_add_f32 v1, v24, v25
    v_add_f32 v2, v26, v27
    v_add_f32 v3, v28, v29
    v_add_f32 v4, v30, v31
    v_add_f32 v1, v1, v2
    v_add_f32 v3, v3, v4
    v_add_f32 v1, v1, v3""")
    allreduce64(g, 1, 2)
    g("v_mul_f32 v1, 0x3b000000, v1")
    for i in range(8):
        g(f"v_sub_f32 v{32+i}, v{24+i}, v1")
    g("v_mul_f32 v3, v32, v32")
    for i in range(1, 8):
        g(f"v_fmac_f32 v3, v{32+i}, v{32+i}")
    allreduce64(g, 3, 2)
    g("v_mul_f32 v3, 0x3b000000, v3")
    bf16r(g, 1, 1)
    bf16r(g, 3, 3)
    g("v_add_f32 v3, 0x3727c5ac, v3")
    bf16r(g, 3, 3)
    g("v_sqrt_f32 v3, v3")
    for i in range(8):
        g(f"v_sub_f32 v{24+i}, v{24+i}, v1")
    bf16r(g, 3, 3)
    g.pad()
    for i in range(4):
        g(f"v_cvt_pk_bf16_f32 v{20+i}, v{24+2*i}, v{25+2*i}")
    g("v_rcp_f32 v3, v3")
    for i in range(4):
        g(f"v_lshlrev_b32 v{24+2*i}, 16, v{20+i}")
        g(f"v_and_b32 v{25+2*i}, 0xffff0000, v{20+i}")
    for i in range(8):
        g(f"v_mul_f32 v{24+i}, v{24+i}, v3")
    for i in range(4):
        g(f"v_cvt_pk_bf16_f32 v{20+i}, v{24+2*i}, v{25+2*i}")
    g("ds_write_b128 v17, v[20:23]")
    g.signal(2, restore=False)
    g.wait(0x0ff, 1)
    g.stamp(2)
    g.gemv(4, 16, 18, 4096, 512)
    g.publish(15, restore=False)
    if o.pace:
        g("s_branch L_qg0")
    elif o.qatom:
        for k in range(8):
            g(f"s_atomic_swap s40, s[56:57], {8192*k}")
        g("s_branch L_qg0")
    else:
        g("""s_cmp_lg_u32 s43, 3
        s_cbranch_scc1 L_qg0
        s_mov_b32 exec_lo, -1
        s_mov_b32 exec_hi, 0
        buffer_store_dword v70, v19, s[32:35], 0 offen sc1
        s_branch L_qg0""")
    g(f"""L_s1b:
    s_lshl_b32 s44, s30, 7
    v_add_u32 v19, s44, v74
    s_add_u32 s44, s44, {L_XN}
    s_movk_i32 s63, 1088
    v_mad_u32_u24 v16, v14, s63, v13
    v_add_u32 v16, s44, v16
    v_add_u32 v17, {L_W1}, v18
    s_lshl_b32 s44, s31, 13
    s_lshl_b32 s63, s30, 8
    s_add_u32 s44, s44, s63
    s_lshl_b32 s63, s60, 6
    s_add_u32 s44, s44, s63
    s_add_u32 s44, s44, {W_HP}
    v_lshl_add_u32 v15, v14, 11, v13
    v_add_u32 v15, s44, v15
    s_min_u32 s44, s31, 27
    s_lshl_b32 s44, s44, 7
    v_add_u32 v1, s44, v74
    global_load_ushort v77, v1, s[18:19]
    global_load_ushort v78, v19, s[22:23]
    s_lshl_b32 s44, s61, 10
    v_add_u32 v19, s44, v19
    global_load_ushort v79, v19, s[4:5]
    s_waitcnt lgkmcnt(0)""")
    g(tagsetup)
    g("""s_cmp_ge_u32 s31, 28
    s_cbranch_scc1 L_qg0""")
    g.wait(0x0ff, 2)
    g.stamp(2)
    g.gemv(2, 16, 17, 4096, 512)
    g.publish(15, restore=False)
    g("L_qg0:")
    g("s_mov_b64 exec, -1")
    g.stamp(3)
    g.pad()
    g(f"""    s_lshl_b32 s44, s30, 2
    s_add_u32 s44, s44, s61
    s_lshl_b32 s44, s44, 3
    s_add_u32 s44, s44, s43
    s_lshl_b32 s44, s44, 10
    s_add_u32 s44, s44, {W_QP}
    v_lshl_add_u32 v15, v0, 4, s44
    s_lshr_b32 s44, s43, 1
    s_mul_i32 s44, s44, 320
    s_and_b32 s63, s43, 1
    s_lshl_b32 s63, s63, 7
    s_add_u32 s44, s44, s63
    s_add_u32 s44, s44, {L_Q}
    v_add_u32 v16, s44, v74
    s_lshl_b32 s44, s43, 12
    s_add_u32 s44, s44, {L_K}
    v_and_b32 v1, 15, v0
    v_lshrrev_b32 v3, 4, v13
    v_xor_b32 v3, v3, v1
    v_lshlrev_b32 v3, 4, v3
    v_lshl_add_u32 v3, v1, 8, v3
    v_add_u32 v60, s44, v3
    v_xor_b32 v61, 64, v60
    v_xor_b32 v62, 0x80, v60
    v_xor_b32 v63, 0xc0, v60
    s_lshl_b32 s44, s43, 2
    s_add_u32 s44, s44, {L_MX}
    v_lshlrev_b32 v64, 5, v14
    v_add_u32 v65, s44, v64
    v_add_u32 v64, {L_MX}, v64
    s_lshl_b32 s44, s43, 5
    s_add_u32 s44, s44, {L_P}
    s_movk_i32 s63, 320
    v_lshrrev_b32 v1, 1, v13
    v_mad_u32_u24 v66, v14, s63, v1
    v_add_u32 v66, s44, v66""")
    if o.qdiag:
        for k in range(4):
            g("s_load_dwordx4 s[64:67], s[48:49], 0 glc")
            g("s_waitcnt lgkmcnt(0)")
            g(f"s_memrealtime s[{80+2*(6+k)}:{81+2*(6+k)}]")
            g("""s_cmp_lg_u64 s[64:65], s[50:51]
            s_cbranch_scc1 L_qd%d
            s_cmp_lg_u64 s[66:67], s[50:51]
            s_cbranch_scc0 L_qok
            L_qd%d:""" % (k, k))
    if o.pace:
        g.wait(0x00f, 3)
        g("s_branch L_qok")
    g("L_qh:")
    if o.qsleep:
        g(f"s_sleep {o.qsleep}")
    g("s_load_dwordx4 s[64:67], s[48:49], 0 glc")
    g.tmo()
    g("""s_waitcnt lgkmcnt(0)
    s_cmp_lg_u64 s[64:65], s[50:51]
    s_cbranch_scc1 L_qh
    s_cmp_lg_u64 s[66:67], s[50:51]
    s_cbranch_scc1 L_qh
    L_qok:""")
    g.stamp(4)
    g("""L_qp:
    buffer_load_dwordx4 v[56:59], v15, s[32:35], 0 offen sc1""")
    g.tmo()
    g("s_waitcnt vmcnt(0)")
    g.tagcheck(56, 1, 2)
    g("s_cbranch_vccnz L_qp")
    g.stamp(5)
    rowsum4(g, 56)
    g("""v_cvt_pk_bf16_f32 v56, v56, v56
    ds_write_b16 v16, v56""")
    g.signal(4, restore=False)
    g(f"""s_mov_b64 exec, -1
    v_add_u32 v16, {L_Q}, v76""")
    g.wait(0xfff, 4)
    for m in range(4):
        g(f"ds_read_b128 v[{36+4*m}:{39+4*m}], v16 offset:{64*m}")
        g(f"ds_read_b128 v[{20+4*m}:{23+4*m}], v{60+m}")
    for m in range(4):
        g(f"s_waitcnt lgkmcnt({2*(3-m)})")
        c = "0" if m == 0 else "v[52:55]"
        g(f"v_mfma_f32_16x16x32_bf16 v[52:55], v[{20+4*m}:{23+4*m}], v[{36+4*m}:{39+4*m}], {c}")
    g.pad()
    g("s_nop 6")
    for rep in range(2):
        g("""v_cvt_pk_bf16_f32 v1, v52, v53
        v_cvt_pk_bf16_f32 v2, v54, v55
        v_lshlrev_b32 v52, 16, v1
        v_and_b32 v53, 0xffff0000, v1
        v_lshlrev_b32 v54, 16, v2
        v_and_b32 v55, 0xffff0000, v2""")
        if rep == 0:
            for i in range(4):
                g(f"v_mul_f32 v{52+i}, {SCALE:#x}, v{52+i}")
    g("""v_max3_f32 v1, v52, v53, v54
    v_max_f32 v1, v1, v55""")
    allreduce_rows(g, 1, 2, "v_max_f32")
    g("""s_mov_b64 exec, 15
    ds_write_b32 v65, v1""")
    g.signal(5, restore=False)
    g.wait(0xff0, 5)
    g("""ds_read_b128 v[20:23], v64
    ds_read_b128 v[24:27], v64 offset:16
    s_waitcnt lgkmcnt(0)
    v_max3_f32 v1, v20, v21, v22
    v_max3_f32 v2, v23, v24, v25
    v_max3_f32 v1, v1, v26, v27
    v_max_f32 v68, v1, v2""")
    for i in range(4):
        g(f"v_sub_f32 v{52+i}, v{52+i}, v68")
    for i in range(4):
        g(f"v_mul_f32 v{52+i}, {LOG2E:#x}, v{52+i}")
    for i in range(4):
        g(f"v_exp_f32 v{52+i}, v{52+i}")
    g("""s_nop 0
    v_cvt_pk_bf16_f32 v2, v52, v53
    v_cvt_pk_bf16_f32 v3, v54, v55
    v_add_f32 v1, v52, v53
    v_add_f32 v4, v54, v55
    v_add_f32 v1, v1, v4
    s_mov_b64 exec, s[46:47]
    ds_write_b64 v66, v[2:3]
    s_mov_b64 exec, -1""")
    allreduce_rows(g, 1, 4, "v_add_f32")
    g("""s_mov_b64 exec, 15
    ds_write_b32 v65, v1 offset:128
    s_mov_b64 exec, -1""")
    g.stamp(6)
    g(f"""s_cmp_lt_u32 s43, 4
    s_cbranch_scc1 L_noh
    s_cmp_ge_u32 s31, 28
    s_cbranch_scc1 L_noh
    s_lshl_b32 s44, s31, 2
    s_add_u32 s44, s44, s60
    s_lshl_b32 s44, s44, 11
    s_add_u32 s44, s44, {W_HP}
    v_lshl_add_u32 v17, v0, 4, s44
    buffer_load_dwordx4 v[56:59], v17, s[32:35], 0 offen sc1
    buffer_load_dwordx4 v[60:63], v17, s[32:35], 0 offen offset:1024 sc1
    L_noh:
    s_lshl_b32 s44, s30, 16
    s_lshl_b32 s63, s61, 12
    s_add_u32 s44, s44, s63
    s_lshl_b32 s63, s62, 9
    s_add_u32 s44, s44, s63
    s_lshl_b32 s63, s43, 6
    s_add_u32 s44, s44, s63
    s_add_u32 s44, s44, {W_OP}
    v_lshl_add_u32 v15, v14, 14, v13
    v_add_u32 v15, s44, v15
    s_lshl_b32 s44, s30, 10
    s_lshl_b32 s63, s61, 8
    s_add_u32 s44, s44, s63
    s_lshr_b32 s63, s62, 2
    s_lshl_b32 s63, s63, 7
    s_add_u32 s44, s44, s63
    s_and_b32 s63, s62, 3
    s_lshl_b32 s63, s63, 4
    s_add_u32 s44, s44, s63
    s_add_u32 s44, s44, {W_MH}
    v_lshl_add_u32 v67, v0, 13, s44
    v_mov_b32 v72, v0
    v_add_u32 v16, {L_P}, v76""")
    g.pad()
    g("s_waitcnt lgkmcnt(0)")
    g("s_barrier")
    g.stamp(7)
    g.gemv(4, 16, 75, 8192, 1024, extra=["ds_read_b128 v[0:3], v64 offset:128", "ds_read_b128 v[4:7], v64 offset:144"])
    g.publish(15, restore=False)
    g("""s_cmp_lg_u32 s43, 3
    s_cbranch_scc1 L_noml
    s_mov_b32 exec_lo, -1
    s_mov_b32 exec_hi, 0
    s_waitcnt lgkmcnt(0)
    v_pk_add_f32 v[0:1], v[0:1], v[2:3]
    v_pk_add_f32 v[4:5], v[4:5], v[6:7]
    v_pk_add_f32 v[0:1], v[0:1], v[4:5]
    v_add_f32 v69, v0, v1
    buffer_store_dwordx4 v[68:71], v67, s[32:35], 0 offen sc1
    L_noml:
    s_mov_b64 exec, -1
    s_waitcnt lgkmcnt(0)
    v_mov_b32 v0, v72
    s_cmp_ge_u32 s43, 4
    s_cbranch_scc1 L_s3b""")
    g(f"""    s_lshl_b32 s44, s30, 2
    s_add_u32 s54, s44, s61
    s_lshl_b32 s44, s54, 2
    s_add_u32 s44, s44, s43
    s_lshl_b32 s44, s44, 12
    s_add_u32 s44, s44, {W_OP}
    v_lshl_add_u32 v15, v0, 4, s44
    s_mul_i32 s44, s43, 320
    s_add_u32 s44, s44, {L_O}
    v_lshrrev_b32 v1, 5, v0
    v_and_b32 v2, 31, v0
    v_lshlrev_b32 v2, 3, v2
    v_lshlrev_b32 v1, 2, v1
    v_add3_u32 v17, v1, v2, s44
    s_lshl_b32 s44, s62, 16
    s_lshl_b32 s63, s54, 8
    s_add_u32 s44, s44, s63
    s_lshl_b32 s63, s43, 6
    s_add_u32 s44, s44, s63
    s_add_u32 s44, s44, {W_SP}
    v_lshl_add_u32 v19, v14, 14, v13
    v_add_u32 v19, s44, v19
    s_lshl_b32 s44, s62, 13
    s_lshl_b32 s63, s30, 7
    s_add_u32 s44, s44, s63
    s_lshl_b32 s63, s61, 2
    s_add_u32 s44, s44, s63
    s_add_u32 s44, s44, {W_FH}
    v_lshl_add_u32 v73, v0, 11, s44

    v_add_u32 v16, {L_O}, v76
    v_add_u32 v18, {L_WO}, v18
    v_mov_b32 v76, s40
    s_mov_b32 s52, 0
    s_mov_b32 s53, -1""")
    g.pad()
    hs = [8, 12, 16, 20, 64, 68, 72, 76]
    g("""L_oh:
    s_load_dwordx16 s[8:23], s[58:59], 0 glc
    s_load_dwordx16 s[64:79], s[58:59], 128 glc""")
    g.tmo()
    g("s_waitcnt lgkmcnt(0)")
    for sp in range(8):
        g(f"s_cmp_lg_u32 s{hs[sp]+2}, s40")
        g("s_cbranch_scc1 L_oh")
    g.stamp(8)
    for n_ in range(4):
        g(f"buffer_load_dwordx4 v[{56+4*n_}:{59+4*n_}], v15, s[32:35], 0 offen offset:{1024*n_} sc1")
    g(f"v_mov_b32 v1, s{hs[0]}")
    for sp in range(1, 8):
        g(f"v_max_f32 v1, s{hs[sp]}, v1")
    for sp in range(8):
        g(f"v_sub_f32 v{36+sp}, s{hs[sp]}, v1")
    for sp in range(8):
        g(f"v_mul_f32 v{36+sp}, {LOG2E:#x}, v{36+sp}")
    for sp in range(8):
        g(f"v_exp_f32 v{36+sp}, v{36+sp}")
    g(f"v_mul_f32 v1, s{hs[0]+1}, v36")
    for sp in range(1, 8):
        g(f"v_fmac_f32 v1, s{hs[sp]+1}, v{36+sp}")
    g("v_rcp_f32 v1, v1")
    for n_ in range(4):
        g(f"v_cndmask_b32 v{36+2*n_}, v{36+2*n_}, v{37+2*n_}, s[52:53]")
    for n_ in range(4):
        g(f"v_mul_f32 v{36+2*n_}, v{36+2*n_}, v1")
    g.pad()
    g("s_barrier")
    g.trpre(4, 18)
    g("L_op2:")
    for n_ in range(4):
        g(f"s_waitcnt vmcnt({3-n_})")
        d = 56 + 4 * n_
        w = f"v[{36+2*n_}:{37+2*n_}]"
        for h_ in range(2):
            if n_ == 0:
                g(f"v_pk_mul_f32 v[{52+2*h_}:{53+2*h_}], v[{d+2*h_}:{d+2*h_+1}], {w} op_sel_hi:[1,0]")
            else:
                g(f"v_pk_fma_f32 v[{52+2*h_}:{53+2*h_}], v[{d+2*h_}:{d+2*h_+1}], {w}, v[{52+2*h_}:{53+2*h_}] op_sel_hi:[1,0,1]")
        g(f"v_perm_b32 v{2+2*n_}, v{d+1}, v{d}, s41")
        g(f"v_perm_b32 v{3+2*n_}, v{d+3}, v{d+2}, s41")
    g.stamp(9)
    g("""v_permlane32_swap_b32 v52, v54
    v_permlane32_swap_b32 v53, v55
    v_lshl_or_b32 v2, v3, 16, v2
    v_lshl_or_b32 v4, v5, 16, v4
    v_add_f32 v52, v52, v54
    v_add_f32 v53, v53, v55
    v_lshl_or_b32 v6, v7, 16, v6
    v_cvt_pk_bf16_f32 v52, v52, v53
    v_lshl_or_b32 v8, v9, 16, v8
    ds_write_b32 v17, v52
    v_xor_b32 v2, s40, v2
    v_xor_b32 v4, s40, v4
    v_xor_b32 v6, s40, v6
    v_xor_b32 v8, s40, v8
    v_or3_b32 v2, v2, v4, v6
    v_or_b32 v2, v2, v8
    v_cmp_ne_u32 vcc, 0, v2
    s_cbranch_vccnz L_opr
    s_waitcnt lgkmcnt(0)
    s_barrier""")
    g.gemv(4, 16, 18, 4096, 512, pre=True)
    g.publish(19, restore=False)
    v70 = "v72"
    g("""s_cmp_lg_u32 s43, 3
    s_cbranch_scc1 L_e1
    s_mov_b64 exec, 15
    buffer_store_dword v76, v73, s[32:35], 0 offen sc1
    L_e1:""")
    g.stamp(10)
    g(END)
    g("L_opr:")
    for n_ in range(4):
        g(f"buffer_load_dwordx4 v[{56+4*n_}:{59+4*n_}], v15, s[32:35], 0 offen offset:{1024*n_} sc1")
    g.tmo()
    g("s_branch L_op2")
    g("L_s3b:")
    g.pad()
    g(f"""s_cmp_ge_u32 s31, 28
    s_cbranch_scc1 L_red
    s_lshl_b32 s44, s30, 16
    s_lshl_b32 s63, s31, 8
    s_add_u32 s44, s44, s63
    s_lshl_b32 s63, s60, 6
    s_add_u32 s44, s44, s63
    s_add_u32 s44, s44, {W_SP + 32*256}
    v_lshl_add_u32 v15, v14, 14, v13
    v_add_u32 v15, s44, v15
    s_lshl_b32 s44, s30, 13
    s_lshr_b32 s63, s31, 2
    s_lshl_b32 s63, s63, 7
    s_add_u32 s44, s44, s63
    s_lshl_b32 s63, s61, 2
    s_add_u32 s44, s44, s63
    s_add_u32 s44, s44, {W_FH + 8*128}
    v_lshl_add_u32 v67, v0, 11, s44
    s_movk_i32 s63, 192
    v_mad_u32_u24 v16, v14, s63, v13
    v_add_u32 v16, {L_H}, v16
    v_add_u32 v18, {L_W2}, v18
    s_mul_i32 s44, s60, 192
    s_add_u32 s44, s44, {L_H}
    v_add_u32 v64, s44, v74
    v_lshlrev_b32 v77, 16, v77
    s_waitcnt vmcnt(1)
    s_branch L_hp2
    L_hp:
    buffer_load_dwordx4 v[56:59], v17, s[32:35], 0 offen sc1
    buffer_load_dwordx4 v[60:63], v17, s[32:35], 0 offen offset:1024 sc1""")
    g.tmo()
    g("""s_waitcnt vmcnt(0)
    L_hp2:""")
    g.tagcheck(56, 1, 2)
    g("s_cbranch_vccnz L_hp")
    g.tagcheck(60, 1, 2)
    g("s_cbranch_vccnz L_hp")
    g.stamp(8)
    for i in range(4):
        g(f"v_add_f32 v{56+i}, v{56+i}, v{60+i}")
    g("s_nop 1")
    rowsum4(g, 56)
    bf16r(g, 56, 56)
    g("v_add_f32 v56, v56, v77")
    bf16r(g, 56, 56)
    g("""v_max_f32 v56, 0, v56
    v_mul_f32 v56, v56, v56
    v_cvt_pk_bf16_f32 v56, v56, v56
    ds_write_b16 v64, v56
    s_barrier""")
    g.trpre(2, 18)
    g("""s_waitcnt lgkmcnt(0)
    s_barrier""")
    g.gemv(2, 16, 18, 4096, 512, pre=True)
    g.publish(15, restore=False)
    g("""s_cmp_lg_u32 s43, 7
    s_cbranch_scc1 L_e2
    s_mov_b64 exec, 15
    buffer_store_dword v70, v67, s[32:35], 0 offen sc1
    L_e2:""")
    g.stamp(10)
    g(END)
    g("L_red:")
    g.pad()
    g(f"""s_lshl_b32 s44, s30, 2
    s_add_u32 s44, s44, s61
    s_lshl_b32 s44, s44, 14
    s_lshl_b32 s63, s60, 12
    s_add_u32 s44, s44, s63
    s_add_u32 s44, s44, {W_SP}
    v_lshl_add_u32 v15, v0, 4, s44
    s_lshl_b32 s44, s60, 2
    s_add_u32 s44, s44, {L_R}
    v_lshl_add_u32 v16, v0, 4, s44
    v_lshlrev_b32 v17, 4, v0
    v_add_u32 v17, {L_R}, v17
    v_lshlrev_b32 v78, 16, v78
    v_lshlrev_b32 v79, 16, v79
    v_mov_b32 v68, 0
    v_mov_b32 v69, 0
    v_mov_b32 v70, 0
    v_mov_b32 v71, 0
    s_cmp_eq_u32 s60, 3
    s_cselect_b32 s52, 0, -1
    s_mov_b32 s53, s52
    s_cselect_b32 s54, 2, 3
    s_lshl_b32 s54, s54, 7
    s_barrier
    s_barrier
    L_fh:
    s_load_dwordx4 s[64:67], s[58:59], 0 glc
    s_load_dwordx4 s[68:71], s[58:59], 128 glc
    s_load_dwordx4 s[72:75], s[58:59], 256 glc
    s_load_dwordx4 s[76:79], s[58:59], s54 glc""")
    g.tmo()
    g("s_waitcnt lgkmcnt(0)")
    for k in range(8):
        g(f"s_cmp_lg_u64 s[{64+2*k}:{65+2*k}], s[50:51]")
        g("s_cbranch_scc1 L_fh")
    g.stamp(8)
    g("L_fp:")
    for n_ in range(3):
        g(f"buffer_load_dwordx4 v[{56+4*n_}:{59+4*n_}], v15, s[32:35], 0 offen offset:{1024*n_} sc1")
    g("""s_mov_b64 exec, s[52:53]
    s_cbranch_execz L_f3
    buffer_load_dwordx4 v[68:71], v15, s[32:35], 0 offen offset:3072 sc1
    s_waitcnt vmcnt(0)""")
    g.tagcheck(68, 1, 2)
    g("""s_cbranch_vccnz L_fp
    L_f3:
    s_mov_b64 exec, -1""")
    g.tmo()
    g("s_waitcnt vmcnt(0)")
    for n_ in range(3):
        g.tagcheck(56 + 4 * n_, 1, 2)
        g("s_cbranch_vccnz L_fp")
    g.stamp(9)
    g("""v_pk_add_f32 v[56:57], v[56:57], v[60:61]
    v_pk_add_f32 v[58:59], v[58:59], v[62:63]
    v_pk_add_f32 v[64:65], v[64:65], v[68:69]
    v_pk_add_f32 v[66:67], v[66:67], v[70:71]
    v_pk_add_f32 v[56:57], v[56:57], v[64:65]
    v_pk_add_f32 v[58:59], v[58:59], v[66:67]
    s_nop 1""")
    rowsum4(g, 56)
    g("""ds_write_b32 v16, v56
    s_waitcnt lgkmcnt(0)
    s_barrier
    s_cmp_lg_u32 s60, 0""")
    g("s_cbranch_scc1 " + ("L_diag" if o.diag else "L_bail"))
    g("""ds_read_b128 v[56:59], v17
    s_waitcnt lgkmcnt(0)
    v_add_f32 v58, v58, v59
    v_add_f32 v56, v56, v57""")
    bf16r(g, 57, 58)
    bf16r(g, 56, 56)
    g("v_add_f32 v57, v57, v78")
    bf16r(g, 57, 57)
    g(f"""v_mul_f32 v1, {LOG2E | 0x80000000:#x}, v57
    v_exp_f32 v1, v1
    s_nop 0
    v_add_f32 v1, 1.0, v1
    v_rcp_f32 v1, v1
    s_nop 0
    v_mul_f32 v57, v57, v1""")
    bf16r(g, 57, 57)
    g("v_mul_f32 v56, v56, v57")
    bf16r(g, 56, 56)
    g(f"""v_add_f32 v56, v56, v79
    v_cvt_pk_bf16_f32 v56, v56, v56
    global_store_short v19, v56, s[24:25]
    s_cmpk_lg_u32 s2, 224
    s_cbranch_scc1 L_end3
    v_mov_b32 v1, 0
    v_mov_b32 v2, s40
    s_mov_b64 exec, 1
    buffer_store_dword v2, v1, s[32:35], 0 offen sc1
    L_end3:""")
    g.stamp(10)
    if o.diag:
        g("L_diag:")
        g("s_mov_b64 exec, 1")
        g("s_waitcnt lgkmcnt(0)")
        g(f"""s_mul_i32 s44, s2, 12
        s_add_u32 s44, s44, s3
        s_lshl_b32 s44, s44, 6
        s_add_u32 s44, s44, {W_ST}
        v_mov_b32 v1, s44""")
        for k in range(11):
            g(f"v_mov_b32 v2, s{80+2*k}")
            g(f"buffer_store_dword v2, v1, s[32:35], 0 offen offset:{4*k}")
        g("v_mov_b32 v2, s42")
        g("buffer_store_dword v2, v1, s[32:35], 0 offen offset:44")
    g("s_endpgm")
    assert g.npad == 8, g.npad
    body = "\n".join(g.L)
    return HEADER + f"""; @launch grid=(256,1,1) block=(768,1,1) lds={LDS_BYTES}
.amdgcn_target "amdgcn-amd-amdhsa--gfx950"
.text
.globl {KN}
.p2align 8
.type {KN},@function
{KN}:
{body}
.section .rodata,"a"
.p2align 6
.amdhsa_kernel {KN}
  .amdhsa_next_free_vgpr 80
  .amdhsa_next_free_sgpr 102
  .amdhsa_accum_offset 80
  .amdhsa_group_segment_fixed_size 0
  .amdhsa_kernarg_size 104
  .amdhsa_user_sgpr_count 2
  .amdhsa_user_sgpr_kernarg_segment_ptr 1
  .amdhsa_system_sgpr_workgroup_id_x 1
.end_amdhsa_kernel
"""


def parse(argv):
    ap = argparse.ArgumentParser()
    ap.add_argument("-o", default="k.s")
    ap.add_argument("--diag", action="store_true")
    ap.add_argument("--win", type=int, default=8)
    ap.add_argument("--nt", default="nt")
    ap.add_argument("--xnt", default="")
    ap.add_argument("--lprio", type=int, default=3)
    ap.add_argument("--spin", type=int, default=0x40000)
    ap.add_argument("--qsleep", type=int, default=0)
    ap.add_argument("--qdiag", action="store_true")
    ap.add_argument("--qatom", type=int, default=1)
    ap.add_argument("--pace", type=int, default=9)
    ap.add_argument("--cprio", type=int, default=0)
    return ap.parse_args(argv)


if __name__ == "__main__":
    o = parse(sys.argv[1:])
    open(o.o, "w").write(build(o))
```

```python
import sys, argparse

KN = "recurrent_scan__sliding_block_cached__dense_activation_squared_relu__decode_kernel"

L_WQ, L_W1, L_K, L_V, L_WO, L_W2 = 0, 16384, 24576, 57344, 90112, 106496
L_XN = 114688
L_Q = L_XN + 4352
L_P = L_Q + 1280
L_O = L_P + 1280
L_H = L_O + 1280
L_MX = L_H + 768
L_LS = L_MX + 128
L_SY = L_LS + 128
L_R = L_SY + 64
LDS_BYTES = L_R + 1024
W_QP, W_HP, W_OP, W_SP = 0x10000, 0x50000, 0x90000, 0x110000
W_QH, W_MH, W_FH = 0x190000, 0x200000, 0x1D0000
W_ST = 0x400000
WS_REC = 0x800000
LOG2E = 0x3FB8AA3B
SCALE = 0x3DB504F3
LCG_A, LCG_C = 1664525, 1013904223

HEADER = open("recurrent_scan__sliding_block_cached__dense_activation_squared_relu__decode.s.ref").read().split("; Override launch")[0]


class G:
    def __init__(s, opt):
        s.L = []
        s.o = opt
        s.nl = 0
        s.npad = 0
        s.cw = False

    def __call__(s, x):
        for ln in x.strip("\n").split("\n"):
            ln = ln.strip()
            if ln:
                s.L.append(ln if ln.endswith(":") else "    " + ln)

    def lab(s, p="L"):
        s.nl += 1
        return f"{p}{s.nl}"

    def stamp(s, k):
        if s.o.diag and not (s.o.qdiag and 6 <= k <= 9 and s.cw):
            s(f"s_memrealtime s[{80+2*k}:{81+2*k}]")

    def pad(s):
        s.npad += 1
        k = s.npad
        s(f"L_pad{k}:")
        s(f"s_cbranch_execz {'L_mid' if k <= 4 else 'L_warm_done'}")

    def tmo(s):
        s("s_sub_u32 s42, s42, 1")
        s("s_cbranch_scc1 L_bail")

    def signal(s, ph, restore=True):
        s(f"""v_mov_b32 v9, {ph}
        s_mov_b64 exec, 1
        ds_write_b32 v12, v9""")
        if restore:
            s("s_mov_b64 exec, -1")

    def wait(s, mask, ph):
        l = s.lab("L_w")
        s(f"s_mov_b64 exec, {mask:#x}")
        s(f"{l}:")
        s("ds_read_b32 v9, v11")
        s.tmo()
        s(f"""s_waitcnt lgkmcnt(0)
        v_cmp_gt_u32 vcc, {ph}, v9
        s_cbranch_vccnz {l}
        s_mov_b64 exec, -1""")

    def tagcheck(s, d, t0, t1, dst="vcc"):
        s(f"""v_perm_b32 v{t0}, v{d+1}, v{d}, s41
        v_perm_b32 v{t1}, v{d+3}, v{d+2}, s41
        v_lshl_or_b32 v{t0}, v{t1}, 16, v{t0}
        v_cmp_ne_u32 {dst}, s40, v{t0}""")

    def embed(s, d):
        for i in range(4):
            s(f"v_and_or_b32 v{d+i}, v{d+i}, v10, s{36+i}")

    def gemv(s, nstep, vact, vtr, tr_step, tr_half, extra=(), pre=False):
        if pre:
            for m in range(nstep):
                s(f"ds_read_b128 v[{36+4*m}:{39+4*m}], v{vact} offset:{64*m}")
            for m in range(nstep):
                s(f"s_waitcnt lgkmcnt({nstep-1-m})")
                c = "0" if m == 0 else "v[52:55]"
                s(f"v_mfma_f32_16x16x32_bf16 v[52:55], v[{20+4*m}:{23+4*m}], v[{36+4*m}:{39+4*m}], {c}")
            return
        for m in range(nstep):
            s(f"ds_read_b128 v[{36+4*m}:{39+4*m}], v{vact} offset:{64*m}")
            s(f"ds_read_b64_tr_b16 v[{20+4*m}:{21+4*m}], v{vtr} offset:{tr_step*m}")
            s(f"ds_read_b64_tr_b16 v[{22+4*m}:{23+4*m}], v{vtr} offset:{tr_step*m+tr_half}")
        for e in extra:
            s(e)
        for m in range(nstep):
            s(f"s_waitcnt lgkmcnt({3*(nstep-1-m)+len(extra)})")
            c = "0" if m == 0 else "v[52:55]"
            s(f"v_mfma_f32_16x16x32_bf16 v[52:55], v[{20+4*m}:{23+4*m}], v[{36+4*m}:{39+4*m}], {c}")

    def trpre(s, nstep, vtr):
        for m in range(nstep):
            s(f"ds_read_b64_tr_b16 v[{20+4*m}:{21+4*m}], v{vtr} offset:{4096*m}")
            s(f"ds_read_b64_tr_b16 v[{22+4*m}:{23+4*m}], v{vtr} offset:{4096*m+512}")

    def publish(s, voff, soff="0", restore=True):
        s("s_mov_b64 exec, s[46:47]")
        s("s_nop 6")
        s.embed(52)
        s(f"buffer_store_dwordx4 v[52:55], v{voff}, s[32:35], {soff} offen sc1")
        if restore:
            s("s_mov_b64 exec, -1")


def bf16r(g, dst, src):
    g(f"v_cvt_pk_bf16_f32 v{dst}, v{src}, v{src}")
    g(f"v_lshlrev_b32 v{dst}, 16, v{dst}")


def allreduce_rows(g, v, t, op):
    g(f"""v_mov_b32 v{t}, v{v}
    s_nop 1
    v_permlane16_swap_b32 v{v}, v{t}
    {op} v{v}, v{v}, v{t}
    v_mov_b32 v{t}, v{v}
    s_nop 1
    v_permlane32_swap_b32 v{v}, v{t}
    {op} v{v}, v{v}, v{t}""")


def allreduce64(g, v, t):
    for r in (8, 4, 2, 1):
        g("s_nop 1")
        g(f"v_add_f32_dpp v{v}, v{v}, v{v} row_ror:{r} row_mask:0xf bank_mask:0xf")
    allreduce_rows(g, v, t, "v_add_f32")


def rowsum4(g, d):
    g(f"""v_permlane32_swap_b32 v{d}, v{d+2}
    v_permlane32_swap_b32 v{d+1}, v{d+3}
    v_add_f32 v{d}, v{d}, v{d+2}
    v_add_f32 v{d+1}, v{d+1}, v{d+3}
    s_nop 1
    v_permlane16_swap_b32 v{d}, v{d+1}
    v_add_f32 v{d}, v{d}, v{d+1}""")


def build(o):
    g = G(o)
    W = o.win
    nt = o.nt
    tagsetup = f"""s_mul_i32 s40, s45, {LCG_A}
    s_add_u32 s40, s40, {LCG_C}
    s_and_b32 s36, s40, 0xff
    s_bfe_u32 s37, s40, 0x80008
    s_bfe_u32 s38, s40, 0x80010
    s_lshr_b32 s39, s40, 24
    s_mov_b32 s50, s40
    s_mov_b32 s51, s40
    v_mov_b32 v70, s40
    v_mov_b32 v71, s40"""
    END = "s_branch L_diag" if o.diag else "s_endpgm"
    g.stamp(0)
    g(f"""s_load_dwordx2 s[36:37], s[0:1], 24
    s_load_dwordx16 s[4:19], s[0:1], 0
    s_load_dwordx2 s[32:33], s[0:1], 96
    v_lshrrev_b32 v1, 6, v0
    s_cmpk_ge_u32 s2, 0x100
    s_cbranch_scc1 L_bail
    v_readfirstlane_b32 s3, v1
    v_and_b32 v0, 63, v0
    s_and_b32 s30, s2, 7
    s_cmp_ge_u32 s3, 8
    s_cbranch_scc1 L_warm
    s_cmp_lt_u32 s3, 4
    s_cbranch_scc1 L_ld1
    s_lshl_b32 s44, s3, 10
    v_lshl_add_u32 v1, v0, 4, s44
    s_waitcnt lgkmcnt(0)
    global_load_dwordx4 v[20:23], v1, s[4:5] offset:-4096 {o.xnt}
    s_branch L_ln_entry
    L_ld1:
    v_lshrrev_b32 v1, 3, v0
    v_and_b32 v2, 7, v0
    v_lshrrev_b32 v3, 3, v0
    v_and_b32 v3, 2, v3
    s_and_b32 s43, s3, 1
    s_lshl_b32 s43, s43, 2
    v_or_b32 v3, s43, v3
    v_xor_b32 v2, v2, v3
    v_lshlrev_b32 v2, 4, v2
    v_lshl_add_u32 v4, v1, 13, v2
    s_lshr_b32 s50, s2, 6
    s_lshl_b32 s50, s50, 20
    s_and_b32 s45, s2, 56
    s_lshl4_add_u32 s50, s45, s50
    s_lshl_b32 s45, s30, 10
    s_add_u32 s50, s50, s45
    s_lshl_b32 s45, s3, 16
    s_add_u32 s50, s50, s45
    s_lshl_b32 s51, 1, 18
    s_lshl_b32 m0, s3, 10
    s_lshl_b32 s38, 1, 22
    s_lshl_b32 s39, 1, 17
    s_waitcnt lgkmcnt(0)""")
    g.stamp(1)
    for t in range(4):
        g(f"buffer_load_dwordx4 v4, s[36:39], s50 offen {nt} lds")
        g("s_addk_i32 m0, 0x1000")
        if t < 3:
            g("s_add_u32 s50, s50, s51")
    g("s_barrier")
    g("s_branch L_ld2")
    g("L_warm:")
    if o.hold:
        g("s_memrealtime s[98:99]")
    g("""s_load_dwordx8 s[20:27], s[0:1], 64
    s_nop 0
    s_barrier
    s_mov_b64 exec, 0
    s_cmp_eq_u32 s3, 8
    s_cbranch_scc1 L_pad1
    s_cmp_eq_u32 s3, 9
    s_cbranch_scc1 L_pad2
    s_cmp_eq_u32 s3, 10
    s_cbranch_scc1 L_pad3
    s_branch L_pad4
    L_mid:
    s_cmp_eq_u32 s3, 8
    s_cbranch_scc1 L_pad5
    s_cmp_eq_u32 s3, 9
    s_cbranch_scc1 L_pad6
    s_cmp_eq_u32 s3, 10
    s_cbranch_scc1 L_pad7
    s_branch L_pad8
    L_warm_done:
    s_mov_b64 exec, -1
    s_waitcnt lgkmcnt(0)
    s_load_dword s45, s[32:33], 0
    s_branch L_P
    L_bail:
    s_endpgm""")
    g(f"""L_ld2:
    s_setprio {o.lprio}
    s_load_dwordx2 s[20:21], s[0:1], 64
    s_lshl_b32 s44, s2, 3
    s_add_u32 s44, s44, s3
    s_lshl_b32 s44, s44, 7
    s_add_u32 s44, s44, {W_QH}
    s_add_u32 s60, s32, s44
    s_addc_u32 s61, s33, 0
    s_load_dword s64, s[60:61], 0 glc
    s_load_dword s65, s[60:61], 512 glc
    s_lshr_b32 s31, s2, 3
    s_movk_i32 s43, 3584
    v_mul_u32_u24 v5, s43, v1
    v_add_u32 v5, v5, v2
    s_mul_i32 s44, s30, 229376
    s_lshl_b32 s46, s31, 7
    s_add_u32 s44, s44, s46
    s_mul_i32 s46, s3, 28672
    s_add_u32 s52, s44, s46
    s_cmp_lt_u32 s31, 28
    s_cselect_b32 s57, 1835008, 0
    s_mov_b32 s58, 114688""")
    setup = {
        2: f"""v_lshl_add_u32 v6, v1, 10, v2
    v_lshrrev_b32 v1, 4, v0
    v_and_b32 v2, 15, v0
    s_lshl_b32 s43, s3, 2
    v_or_b32 v3, s43, v1
    v_xor_b32 v3, v2, v3
    v_lshlrev_b32 v3, 4, v3
    v_lshl_add_u32 v7, v1, 8, v3
    s_and_b32 s44, s31, 3
    s_lshl_b32 s46, s44, 3
    s_add_u32 s46, s46, s30
    s_lshl_b32 s46, s46, 20
    s_lshr_b32 s47, s31, 2
    s_lshl_b32 s48, s47, 15
    s_add_u32 s46, s46, s48
    s_lshl_b32 s45, s3, 10
    s_add_u32 s46, s46, s45
    s_add_u32 s53, s46, 786432
    s_mov_b32 s54, s53""",
    }
    late = f"""s_lshr_b32 s43, s3, 1
    s_lshl_b32 s43, s43, 2
    v_or_b32 v3, s43, v1
    v_lshlrev_b32 v3, 1, v3
    v_xor_b32 v3, v2, v3
    v_lshlrev_b32 v3, 4, v3
    v_lshl_add_u32 v8, v1, 8, v3
    s_lshl_b32 s46, s30, 2
    s_add_u32 s46, s46, s44
    s_lshl_b32 s46, s46, 17
    s_lshl_b32 s47, s47, 7
    s_add_u32 s46, s46, s47
    s_lshl_b32 s48, s3, 13
    s_add_u32 s55, s46, s48
    s_lshl_b32 s46, s31, 16
    s_lshl_b32 s47, s30, 7
    s_add_u32 s46, s46, s47
    s_add_u32 s56, s46, s48
    s_mov_b32 s59, 0x8000
    s_lshl_b32 s44, s3, 2
    s_add_u32 s44, s44, {L_SY}
    v_mov_b32 v12, s44
    s_mov_b32 s34, {WS_REC:#x}
    s_mov_b32 s35, 0x20000
    s_lshl_b32 s44, s2, 10
    s_lshl_b32 s46, s3, 8
    s_add_u32 s44, s44, s46
    s_add_u32 s44, s44, {W_MH}
    s_add_u32 s60, s32, s44
    s_addc_u32 s61, s33, 0
    s_load_dword s66, s[60:61], 0 glc
    s_load_dword s67, s[60:61], 128 glc
    s_cmp_lt_u32 s31, 28
    s_cbranch_scc1 L_nft
    s_and_b32 s44, s31, 3
    s_lshl2_add_u32 s44, s30, s44
    s_lshl2_add_u32 s44, s44, s3
    s_lshl_b32 s44, s44, 9
    s_add_u32 s44, s44, {W_FH}
    s_add_u32 s60, s32, s44
    s_addc_u32 s61, s33, 0
    s_load_dword s68, s[60:61], 0 glc
    s_load_dword s69, s[60:61], 128 glc
    s_load_dword s70, s[60:61], 256 glc
    s_load_dword s71, s[60:61], 384 glc
    L_nft:"""
    phases = [None, ("v5", 16, "s57", 52, "s58", 2), ("v7", 6, "0x2000000", 53, 4096, 8),
              ("v8", 8, None, 54, 4096, 8), ("v6", 12, "0x400000", 55, "s59", 4), ("v6", 20, "s57", 56, "s59", 2)]
    ends = [3, 5, o.pace or 12, 13]
    n = 4
    flagged = 0
    assert 6 <= W <= 13

    def flag_upto(done_idx):
        nonlocal flagged
        ph = flagged
        while ph < 4 and ends[ph] <= done_idx:
            ph += 1
        if ph > flagged:
            flagged = ph
            if ph != 3:
                g.stamp(1 + min(ph, 3))
            g.signal(ph)

    for pi in range(1, 6):
        (va, base, size, so, step, cnt) = phases[pi]
        if pi in setup:
            g(setup[pi])
        if pi == 5:
            g("s_waitcnt lgkmcnt(0)")
        g(f"s_mov_b32 s36, s{base}")
        g(f"s_mov_b32 s37, s{base+1}")
        if size is not None:
            g(f"s_mov_b32 s38, {size}")
        for t in range(cnt):
            if n == W:
                g(late)
            if n >= W:
                g(f"s_waitcnt vmcnt({W-1})")
                flag_upto(n - W)
            g(f"buffer_load_dwordx4 {va}, s[36:39], s{so} offen {nt} lds")
            g("s_addk_i32 m0, 0x1000")
            if t + 1 < cnt:
                g(f"s_addk_i32 s{so}, {step}" if isinstance(step, int) else f"s_add_u32 s{so}, s{so}, {step}")
            n += 1
    assert flagged == 4
    g("s_waitcnt vmcnt(6)")
    g.stamp(5)
    g("s_barrier")
    g("s_waitcnt vmcnt(0)")
    g.stamp(6)
    g("s_barrier")
    g(END)

    g.cw = True
    g(f"""L_ln_entry:
    v_and_b32 v1, 15, v0
    v_lshlrev_b32 v1, 2, v1
    v_add_u32 v11, {L_SY}, v1
    v_mov_b32 v2, 0
    ds_write_b32 v11, v2
    s_waitcnt lgkmcnt(0)
    s_barrier
    s_load_dword s45, s[32:33], 0
    s_load_dwordx8 s[20:27], s[0:1], 64
    L_P:""")
    g.stamp(1)
    g(f"""s_sub_u32 s43, s3, 4
    s_setprio {o.cprio}
    s_lshr_b32 s31, s2, 3
    s_lshl_b32 s44, s2, 3
    s_add_u32 s44, s44, s43
    s_lshl_b32 s44, s44, 7
    s_add_u32 s44, s44, {W_QH}
    s_add_u32 s48, s32, s44
    s_addc_u32 s49, s33, 0
    s_and_b32 s60, s43, 3
    s_and_b32 s61, s31, 3
    s_lshl_b32 s44, s2, 10
    s_lshl_b32 s63, s43, 8
    s_add_u32 s44, s44, s63
    s_add_u32 s44, s44, {W_MH}
    s_lshl_b32 s63, s30, 2
    s_add_u32 s63, s63, s61
    s_lshl_b32 s63, s63, 11
    s_lshl_b32 s65, s60, 9
    s_add_u32 s63, s63, s65
    s_add_u32 s63, s63, {W_FH}
    s_cmp_lt_u32 s43, 4
    s_cselect_b32 s44, s44, s63
    s_add_u32 s58, s32, s44
    s_addc_u32 s59, s33, 0
    s_mov_b32 s34, {WS_REC:#x}
    s_mov_b32 s35, 0x20000
    s_mov_b32 s42, {o.spin:#x}
    v_mov_b32 v10, 0xffffff00
    v_and_b32 v1, 15, v0
    v_lshlrev_b32 v2, 2, v1
    v_add_u32 v11, {L_SY}, v2
    s_lshl_b32 s44, s3, 2
    s_add_u32 s44, s44, {L_SY}
    v_mov_b32 v12, s44
    v_lshrrev_b32 v13, 4, v0
    v_and_b32 v14, 3, v0
    s_mov_b32 s46, 0x000f000f
    s_mov_b32 s47, 0x000f000f
    s_mov_b32 s41, 0x0c0c0400
    s_lshr_b32 s62, s31, 2
    v_bfe_u32 v2, v0, 2, 2
    v_lshrrev_b32 v3, 1, v2
    v_and_b32 v4, 1, v13
    v_lshl_or_b32 v3, v4, 1, v3
    v_lshlrev_b32 v3, 1, v3
    v_lshrrev_b32 v5, 1, v14
    s_lshl_b32 s44, s60, 1
    v_or_b32 v5, s44, v5
    v_xor_b32 v3, v3, v5
    v_lshlrev_b32 v3, 4, v3
    v_and_b32 v6, 1, v0
    v_lshl_or_b32 v3, v6, 3, v3
    v_lshl_add_u32 v7, v13, 3, v2
    v_lshl_add_u32 v18, v7, 7, v3
    v_lshl_or_b32 v3, v4, 2, v2
    v_lshlrev_b32 v3, 1, v3
    v_lshrrev_b32 v5, 1, v14
    s_lshl_b32 s44, s43, 1
    v_or_b32 v5, s44, v5
    v_xor_b32 v3, v3, v5
    v_lshlrev_b32 v3, 4, v3
    v_lshl_or_b32 v3, v6, 3, v3
    v_lshl_add_u32 v3, v7, 8, v3
    v_add_u32 v75, {L_V}, v3
    v_lshlrev_b32 v1, 3, v1
    v_lshl_add_u32 v74, v13, 1, v1
    v_lshlrev_b32 v13, 4, v13
    s_movk_i32 s44, 320
    v_mad_u32_u24 v76, v14, s44, v13
    s_cmp_ge_u32 s43, 4
    s_cbranch_scc1 L_s1b""")
    g(f"""s_lshr_b32 s44, s31, 3
    s_lshl_b32 s64, s44, 2
    s_lshl_b32 s44, s44, 8
    s_add_u32 s63, s44, {L_XN}
    s_movk_i32 s65, 1088
    v_mad_u32_u24 v16, v14, s65, v13
    v_add_u32 v16, s63, v16
    s_mul_i32 s63, s43, 1088
    s_add_u32 s63, s63, {L_XN}
    v_lshl_add_u32 v17, v0, 4, s63
    s_lshl_b32 s63, s30, 15
    s_add_u32 s44, s44, s63
    s_and_b32 s65, s31, 7
    s_lshl_b32 s63, s65, 10
    s_add_u32 s44, s44, s63
    s_lshl_b32 s63, s60, 6
    s_add_u32 s44, s44, s63
    s_add_u32 s44, s44, {W_QP}
    v_lshl_add_u32 v15, v14, 13, v13
    v_add_u32 v15, s44, v15
    s_lshl_b32 s44, s30, 3
    s_add_u32 s44, s44, s65
    s_lshl_b32 s44, s44, 7
    s_add_u32 s44, s44, s64
    s_add_u32 s44, s44, {W_QH}
    v_lshl_add_u32 v19, v0, 13, s44
    s_lshl_b32 s63, s43, 16
    s_add_u32 s44, s44, s63
    s_add_u32 s56, s32, s44
    s_addc_u32 s57, s33, 0
    s_waitcnt lgkmcnt(0)""")
    g(tagsetup)
    g("s_waitcnt vmcnt(0)")
    for i in range(4):
        g(f"v_lshlrev_b32 v{24+2*i}, 16, v{20+i}")
        g(f"v_and_b32 v{25+2*i}, 0xffff0000, v{20+i}")
    g("""v_add_f32 v1, v24, v25
    v_add_f32 v2, v26, v27
    v_add_f32 v3, v28, v29
    v_add_f32 v4, v30, v31
    v_add_f32 v1, v1, v2
    v_add_f32 v3, v3, v4
    v_add_f32 v1, v1, v3""")
    allreduce64(g, 1, 2)
    g("v_mul_f32 v1, 0x3b000000, v1")
    for i in range(8):
        g(f"v_sub_f32 v{32+i}, v{24+i}, v1")
    g("v_mul_f32 v3, v32, v32")
    for i in range(1, 8):
        g(f"v_fmac_f32 v3, v{32+i}, v{32+i}")
    allreduce64(g, 3, 2)
    g("v_mul_f32 v3, 0x3b000000, v3")
    bf16r(g, 1, 1)
    bf16r(g, 3, 3)
    g("v_add_f32 v3, 0x3727c5ac, v3")
    bf16r(g, 3, 3)
    g("v_sqrt_f32 v3, v3")
    for i in range(8):
        g(f"v_sub_f32 v{24+i}, v{24+i}, v1")
    bf16r(g, 3, 3)
    g.pad()
    for i in range(4):
        g(f"v_cvt_pk_bf16_f32 v{20+i}, v{24+2*i}, v{25+2*i}")
    g("v_rcp_f32 v3, v3")
    for i in range(4):
        g(f"v_lshlrev_b32 v{24+2*i}, 16, v{20+i}")
        g(f"v_and_b32 v{25+2*i}, 0xffff0000, v{20+i}")
    for i in range(8):
        g(f"v_mul_f32 v{24+i}, v{24+i}, v3")
    for i in range(4):
        g(f"v_cvt_pk_bf16_f32 v{20+i}, v{24+2*i}, v{25+2*i}")
    g("ds_write_b128 v17, v[20:23]")
    g.signal(2, restore=False)
    g.wait(0x0ff, 1)
    g.stamp(2)
    g.gemv(4, 16, 18, 4096, 512)
    g.publish(15, restore=False)
    if o.pace:
        g("s_branch L_qg0")
    elif o.qatom:
        for k in range(8):
            g(f"s_atomic_swap s40, s[56:57], {8192*k}")
        g("s_branch L_qg0")
    else:
        g("""s_cmp_lg_u32 s43, 3
        s_cbranch_scc1 L_qg0
        s_mov_b32 exec_lo, -1
        s_mov_b32 exec_hi, 0
        buffer_store_dword v70, v19, s[32:35], 0 offen sc1
        s_branch L_qg0""")
    g(f"""L_s1b:
    s_lshl_b32 s44, s30, 7
    v_add_u32 v19, s44, v74
    s_add_u32 s44, s44, {L_XN}
    s_movk_i32 s63, 1088
    v_mad_u32_u24 v16, v14, s63, v13
    v_add_u32 v16, s44, v16
    v_add_u32 v17, {L_W1}, v18
    s_lshl_b32 s44, s31, 13
    s_lshl_b32 s63, s30, 8
    s_add_u32 s44, s44, s63
    s_lshl_b32 s63, s60, 6
    s_add_u32 s44, s44, s63
    s_add_u32 s44, s44, {W_HP}
    v_lshl_add_u32 v15, v14, 11, v13
    v_add_u32 v15, s44, v15
    s_min_u32 s44, s31, 27
    s_lshl_b32 s44, s44, 7
    v_add_u32 v1, s44, v74
    global_load_ushort v77, v1, s[18:19]
    global_load_ushort v78, v19, s[22:23]
    s_lshl_b32 s44, s61, 10
    v_add_u32 v19, s44, v19
    global_load_ushort v79, v19, s[4:5]
    s_waitcnt lgkmcnt(0)""")
    g(tagsetup)
    g("""s_cmp_ge_u32 s31, 28
    s_cbranch_scc1 L_qg0""")
    g.wait(0x0ff, 2)
    g.stamp(2)
    g.gemv(2, 16, 17, 4096, 512)
    g.publish(15, restore=False)
    g("L_qg0:")
    g("s_mov_b64 exec, -1")
    g.stamp(3)
    g.pad()
    g(f"""    s_lshl_b32 s44, s30, 2
    s_add_u32 s44, s44, s61
    s_lshl_b32 s44, s44, 3
    s_add_u32 s44, s44, s43
    s_lshl_b32 s44, s44, 10
    s_add_u32 s44, s44, {W_QP}
    v_lshl_add_u32 v15, v0, 4, s44
    s_lshr_b32 s44, s43, 1
    s_mul_i32 s44, s44, 320
    s_and_b32 s63, s43, 1
    s_lshl_b32 s63, s63, 7
    s_add_u32 s44, s44, s63
    s_add_u32 s44, s44, {L_Q}
    v_add_u32 v16, s44, v74
    s_lshl_b32 s44, s43, 12
    s_add_u32 s44, s44, {L_K}
    v_and_b32 v1, 15, v0
    v_lshrrev_b32 v3, 4, v13
    v_xor_b32 v3, v3, v1
    v_lshlrev_b32 v3, 4, v3
    v_lshl_add_u32 v3, v1, 8, v3
    v_add_u32 v60, s44, v3
    v_xor_b32 v61, 64, v60
    v_xor_b32 v62, 0x80, v60
    v_xor_b32 v63, 0xc0, v60
    s_lshl_b32 s44, s43, 2
    s_add_u32 s44, s44, {L_MX}
    v_lshlrev_b32 v64, 5, v14
    v_add_u32 v65, s44, v64
    v_add_u32 v64, {L_MX}, v64
    s_lshl_b32 s44, s43, 5
    s_add_u32 s44, s44, {L_P}
    s_movk_i32 s63, 320
    v_lshrrev_b32 v1, 1, v13
    v_mad_u32_u24 v66, v14, s63, v1
    v_add_u32 v66, s44, v66""")
    if o.qdiag:
        for k in range(4):
            g("s_load_dwordx4 s[64:67], s[48:49], 0 glc")
            g("s_waitcnt lgkmcnt(0)")
            g(f"s_memrealtime s[{80+2*(6+k)}:{81+2*(6+k)}]")
            g("""s_cmp_lg_u64 s[64:65], s[50:51]
            s_cbranch_scc1 L_qd%d
            s_cmp_lg_u64 s[66:67], s[50:51]
            s_cbranch_scc0 L_qok
            L_qd%d:""" % (k, k))
    if o.pace:
        g.wait(0x00f, 3)
        g("s_branch L_qok")
    g("L_qh:")
    if o.qsleep:
        g(f"s_sleep {o.qsleep}")
    g("s_load_dwordx4 s[64:67], s[48:49], 0 glc")
    g.tmo()
    g("""s_waitcnt lgkmcnt(0)
    s_cmp_lg_u64 s[64:65], s[50:51]
    s_cbranch_scc1 L_qh
    s_cmp_lg_u64 s[66:67], s[50:51]
    s_cbranch_scc1 L_qh
    L_qok:""")
    g.stamp(4)
    g("""L_qp:
    buffer_load_dwordx4 v[56:59], v15, s[32:35], 0 offen sc1""")
    g.tmo()
    g("s_waitcnt vmcnt(0)")
    g.tagcheck(56, 1, 2)
    g("s_cbranch_vccnz L_qp")
    g.stamp(5)
    rowsum4(g, 56)
    g("""v_cvt_pk_bf16_f32 v56, v56, v56
    ds_write_b16 v16, v56""")
    g.signal(4, restore=False)
    g(f"""s_mov_b64 exec, -1
    v_add_u32 v16, {L_Q}, v76""")
    g.wait(0xfff, 4)
    for m in range(4):
        g(f"ds_read_b128 v[{36+4*m}:{39+4*m}], v16 offset:{64*m}")
        g(f"ds_read_b128 v[{20+4*m}:{23+4*m}], v{60+m}")
    for m in range(4):
        g(f"s_waitcnt lgkmcnt({2*(3-m)})")
        c = "0" if m == 0 else "v[52:55]"
        g(f"v_mfma_f32_16x16x32_bf16 v[52:55], v[{20+4*m}:{23+4*m}], v[{36+4*m}:{39+4*m}], {c}")
    g.pad()
    g("s_nop 6")
    for rep in range(2):
        g("""v_cvt_pk_bf16_f32 v1, v52, v53
        v_cvt_pk_bf16_f32 v2, v54, v55
        v_lshlrev_b32 v52, 16, v1
        v_and_b32 v53, 0xffff0000, v1
        v_lshlrev_b32 v54, 16, v2
        v_and_b32 v55, 0xffff0000, v2""")
        if rep == 0:
            for i in range(4):
                g(f"v_mul_f32 v{52+i}, {SCALE:#x}, v{52+i}")
    g("""v_max3_f32 v1, v52, v53, v54
    v_max_f32 v1, v1, v55""")
    allreduce_rows(g, 1, 2, "v_max_f32")
    g("""s_mov_b64 exec, 15
    ds_write_b32 v65, v1""")
    g.signal(5, restore=False)
    g.wait(0xff0, 5)
    g("""ds_read_b128 v[20:23], v64
    ds_read_b128 v[24:27], v64 offset:16
    s_waitcnt lgkmcnt(0)
    v_max3_f32 v1, v20, v21, v22
    v_max3_f32 v2, v23, v24, v25
    v_max3_f32 v1, v1, v26, v27
    v_max_f32 v68, v1, v2""")
    for i in range(4):
        g(f"v_sub_f32 v{52+i}, v{52+i}, v68")
    for i in range(4):
        g(f"v_mul_f32 v{52+i}, {LOG2E:#x}, v{52+i}")
    for i in range(4):
        g(f"v_exp_f32 v{52+i}, v{52+i}")
    g("""s_nop 0
    v_cvt_pk_bf16_f32 v2, v52, v53
    v_cvt_pk_bf16_f32 v3, v54, v55
    v_add_f32 v1, v52, v53
    v_add_f32 v4, v54, v55
    v_add_f32 v1, v1, v4
    s_mov_b64 exec, s[46:47]
    ds_write_b64 v66, v[2:3]
    s_mov_b64 exec, -1""")
    allreduce_rows(g, 1, 4, "v_add_f32")
    g("""s_mov_b64 exec, 15
    ds_write_b32 v65, v1 offset:128
    s_mov_b64 exec, -1""")
    g.stamp(6)
    g(f"""s_cmp_lt_u32 s43, 4
    s_cbranch_scc1 L_noh
    s_cmp_ge_u32 s31, 28
    s_cbranch_scc1 L_noh
    s_lshl_b32 s44, s31, 2
    s_add_u32 s44, s44, s60
    s_lshl_b32 s44, s44, 11
    s_add_u32 s44, s44, {W_HP}
    v_lshl_add_u32 v17, v0, 4, s44
    buffer_load_dwordx4 v[56:59], v17, s[32:35], 0 offen sc1
    buffer_load_dwordx4 v[60:63], v17, s[32:35], 0 offen offset:1024 sc1
    L_noh:
    s_lshl_b32 s44, s30, 16
    s_lshl_b32 s63, s61, 12
    s_add_u32 s44, s44, s63
    s_lshl_b32 s63, s62, 9
    s_add_u32 s44, s44, s63
    s_lshl_b32 s63, s43, 6
    s_add_u32 s44, s44, s63
    s_add_u32 s44, s44, {W_OP}
    v_lshl_add_u32 v15, v14, 14, v13
    v_add_u32 v15, s44, v15
    s_lshl_b32 s44, s30, 10
    s_lshl_b32 s63, s61, 8
    s_add_u32 s44, s44, s63
    s_lshr_b32 s63, s62, 2
    s_lshl_b32 s63, s63, 7
    s_add_u32 s44, s44, s63
    s_and_b32 s63, s62, 3
    s_lshl_b32 s63, s63, 4
    s_add_u32 s44, s44, s63
    s_add_u32 s44, s44, {W_MH}
    v_lshl_add_u32 v67, v0, 13, s44
    v_mov_b32 v72, v0
    v_add_u32 v16, {L_P}, v76""")
    g.pad()
    g("s_waitcnt lgkmcnt(0)")
    g("s_barrier")
    g.stamp(7)
    g.gemv(4, 16, 75, 8192, 1024, extra=["ds_read_b128 v[0:3], v64 offset:128", "ds_read_b128 v[4:7], v64 offset:144"])
    g.publish(15, restore=False)
    g("""s_cmp_lg_u32 s43, 3
    s_cbranch_scc1 L_noml
    s_mov_b32 exec_lo, -1
    s_mov_b32 exec_hi, 0
    s_waitcnt lgkmcnt(0)
    v_pk_add_f32 v[0:1], v[0:1], v[2:3]
    v_pk_add_f32 v[4:5], v[4:5], v[6:7]
    v_pk_add_f32 v[0:1], v[0:1], v[4:5]
    v_add_f32 v69, v0, v1
    buffer_store_dwordx4 v[68:71], v67, s[32:35], 0 offen sc1
    L_noml:
    s_mov_b64 exec, -1
    s_waitcnt lgkmcnt(0)
    v_mov_b32 v0, v72
    s_cmp_ge_u32 s43, 4
    s_cbranch_scc1 L_s3b""")
    g(f"""    s_lshl_b32 s44, s30, 2
    s_add_u32 s54, s44, s61
    s_lshl_b32 s44, s54, 2
    s_add_u32 s44, s44, s43
    s_lshl_b32 s44, s44, 12
    s_add_u32 s44, s44, {W_OP}
    v_lshl_add_u32 v15, v0, 4, s44
    s_mul_i32 s44, s43, 320
    s_add_u32 s44, s44, {L_O}
    v_lshrrev_b32 v1, 5, v0
    v_and_b32 v2, 31, v0
    v_lshlrev_b32 v2, 3, v2
    v_lshlrev_b32 v1, 2, v1
    v_add3_u32 v17, v1, v2, s44
    s_lshl_b32 s44, s62, 16
    s_lshl_b32 s63, s54, 8
    s_add_u32 s44, s44, s63
    s_lshl_b32 s63, s43, 6
    s_add_u32 s44, s44, s63
    s_add_u32 s44, s44, {W_SP}
    v_lshl_add_u32 v19, v14, 14, v13
    v_add_u32 v19, s44, v19
    s_lshl_b32 s44, s62, 13
    s_lshl_b32 s63, s30, 7
    s_add_u32 s44, s44, s63
    s_lshl_b32 s63, s61, 2
    s_add_u32 s44, s44, s63
    s_add_u32 s44, s44, {W_FH}
    v_lshl_add_u32 v73, v0, 11, s44

    v_add_u32 v16, {L_O}, v76
    v_add_u32 v18, {L_WO}, v18
    v_mov_b32 v76, s40
    s_mov_b32 s52, 0
    s_mov_b32 s53, -1""")
    g.pad()
    hs = [8, 12, 16, 20, 64, 68, 72, 76]
    g("""L_oh:
    s_load_dwordx16 s[8:23], s[58:59], 0 glc
    s_load_dwordx16 s[64:79], s[58:59], 128 glc""")
    g.tmo()
    g("s_waitcnt lgkmcnt(0)")
    for sp in range(8):
        g(f"s_cmp_lg_u32 s{hs[sp]+2}, s40")
        g("s_cbranch_scc1 L_oh")
    g.stamp(8)
    for n_ in range(4):
        g(f"buffer_load_dwordx4 v[{56+4*n_}:{59+4*n_}], v15, s[32:35], 0 offen offset:{1024*n_} sc1")
    g(f"v_mov_b32 v1, s{hs[0]}")
    for sp in range(1, 8):
        g(f"v_max_f32 v1, s{hs[sp]}, v1")
    for sp in range(8):
        g(f"v_sub_f32 v{36+sp}, s{hs[sp]}, v1")
    for sp in range(8):
        g(f"v_mul_f32 v{36+sp}, {LOG2E:#x}, v{36+sp}")
    for sp in range(8):
        g(f"v_exp_f32 v{36+sp}, v{36+sp}")
    g(f"v_mul_f32 v1, s{hs[0]+1}, v36")
    for sp in range(1, 8):
        g(f"v_fmac_f32 v1, s{hs[sp]+1}, v{36+sp}")
    g("v_rcp_f32 v1, v1")
    for n_ in range(4):
        g(f"v_cndmask_b32 v{36+2*n_}, v{36+2*n_}, v{37+2*n_}, s[52:53]")
    for n_ in range(4):
        g(f"v_mul_f32 v{36+2*n_}, v{36+2*n_}, v1")
    g.pad()
    g("s_barrier")
    g.trpre(4, 18)
    g("L_op2:")
    for n_ in range(4):
        g(f"s_waitcnt vmcnt({3-n_})")
        d = 56 + 4 * n_
        w = f"v[{36+2*n_}:{37+2*n_}]"
        for h_ in range(2):
            if n_ == 0:
                g(f"v_pk_mul_f32 v[{52+2*h_}:{53+2*h_}], v[{d+2*h_}:{d+2*h_+1}], {w} op_sel_hi:[1,0]")
            else:
                g(f"v_pk_fma_f32 v[{52+2*h_}:{53+2*h_}], v[{d+2*h_}:{d+2*h_+1}], {w}, v[{52+2*h_}:{53+2*h_}] op_sel_hi:[1,0,1]")
        g(f"v_perm_b32 v{2+2*n_}, v{d+1}, v{d}, s41")
        g(f"v_perm_b32 v{3+2*n_}, v{d+3}, v{d+2}, s41")
    g.stamp(9)
    g("""v_permlane32_swap_b32 v52, v54
    v_permlane32_swap_b32 v53, v55
    v_lshl_or_b32 v2, v3, 16, v2
    v_lshl_or_b32 v4, v5, 16, v4
    v_add_f32 v52, v52, v54
    v_add_f32 v53, v53, v55
    v_lshl_or_b32 v6, v7, 16, v6
    v_cvt_pk_bf16_f32 v52, v52, v53
    v_lshl_or_b32 v8, v9, 16, v8
    ds_write_b32 v17, v52
    v_xor_b32 v2, s40, v2
    v_xor_b32 v4, s40, v4
    v_xor_b32 v6, s40, v6
    v_xor_b32 v8, s40, v8
    v_or3_b32 v2, v2, v4, v6
    v_or_b32 v2, v2, v8
    v_cmp_ne_u32 vcc, 0, v2
    s_cbranch_vccnz L_opr
    s_waitcnt lgkmcnt(0)
    s_barrier""")
    g.gemv(4, 16, 18, 4096, 512, pre=True)
    g.publish(19, restore=False)
    v70 = "v72"
    g("""s_cmp_lg_u32 s43, 3
    s_cbranch_scc1 L_e1
    s_mov_b64 exec, 15
    buffer_store_dword v76, v73, s[32:35], 0 offen sc1
    L_e1:""")
    g.stamp(10)
    g(END)
    g("L_opr:")
    for n_ in range(4):
        g(f"buffer_load_dwordx4 v[{56+4*n_}:{59+4*n_}], v15, s[32:35], 0 offen offset:{1024*n_} sc1")
    g.tmo()
    g("s_branch L_op2")
    g("L_s3b:")
    g.pad()
    g(f"""s_cmp_ge_u32 s31, 28
    s_cbranch_scc1 L_red
    s_lshl_b32 s44, s30, 16
    s_lshl_b32 s63, s31, 8
    s_add_u32 s44, s44, s63
    s_lshl_b32 s63, s60, 6
    s_add_u32 s44, s44, s63
    s_add_u32 s44, s44, {W_SP + 32*256}
    v_lshl_add_u32 v15, v14, 14, v13
    v_add_u32 v15, s44, v15
    s_lshl_b32 s44, s30, 13
    s_lshr_b32 s63, s31, 2
    s_lshl_b32 s63, s63, 7
    s_add_u32 s44, s44, s63
    s_lshl_b32 s63, s61, 2
    s_add_u32 s44, s44, s63
    s_add_u32 s44, s44, {W_FH + 8*128}
    v_lshl_add_u32 v67, v0, 11, s44
    s_movk_i32 s63, 192
    v_mad_u32_u24 v16, v14, s63, v13
    v_add_u32 v16, {L_H}, v16
    v_add_u32 v18, {L_W2}, v18
    s_mul_i32 s44, s60, 192
    s_add_u32 s44, s44, {L_H}
    v_add_u32 v64, s44, v74
    v_lshlrev_b32 v77, 16, v77
    s_waitcnt vmcnt(1)
    s_branch L_hp2
    L_hp:
    buffer_load_dwordx4 v[56:59], v17, s[32:35], 0 offen sc1
    buffer_load_dwordx4 v[60:63], v17, s[32:35], 0 offen offset:1024 sc1""")
    g.tmo()
    g("""s_waitcnt vmcnt(0)
    L_hp2:""")
    g.tagcheck(56, 1, 2)
    g("s_cbranch_vccnz L_hp")
    g.tagcheck(60, 1, 2)
    g("s_cbranch_vccnz L_hp")
    g.stamp(8)
    for i in range(4):
        g(f"v_add_f32 v{56+i}, v{56+i}, v{60+i}")
    g("s_nop 1")
    rowsum4(g, 56)
    bf16r(g, 56, 56)
    g("v_add_f32 v56, v56, v77")
    bf16r(g, 56, 56)
    g("""v_max_f32 v56, 0, v56
    v_mul_f32 v56, v56, v56
    v_cvt_pk_bf16_f32 v56, v56, v56
    ds_write_b16 v64, v56
    s_barrier""")
    g.trpre(2, 18)
    g("""s_waitcnt lgkmcnt(0)
    s_barrier""")
    g.gemv(2, 16, 18, 4096, 512, pre=True)
    g.publish(15, restore=False)
    g("""s_cmp_lg_u32 s43, 7
    s_cbranch_scc1 L_e2
    s_mov_b64 exec, 15
    buffer_store_dword v70, v67, s[32:35], 0 offen sc1
    L_e2:""")
    g.stamp(10)
    g(END)
    g("L_red:")
    g.pad()
    g(f"""s_lshl_b32 s44, s30, 2
    s_add_u32 s44, s44, s61
    s_lshl_b32 s44, s44, 14
    s_lshl_b32 s63, s60, 12
    s_add_u32 s44, s44, s63
    s_add_u32 s44, s44, {W_SP}
    v_lshl_add_u32 v15, v0, 4, s44
    s_lshl_b32 s44, s60, 2
    s_add_u32 s44, s44, {L_R}
    v_lshl_add_u32 v16, v0, 4, s44
    v_lshlrev_b32 v17, 4, v0
    v_add_u32 v17, {L_R}, v17
    v_lshlrev_b32 v78, 16, v78
    v_lshlrev_b32 v79, 16, v79
    v_mov_b32 v68, 0
    v_mov_b32 v69, 0
    v_mov_b32 v70, 0
    v_mov_b32 v71, 0
    s_cmp_eq_u32 s60, 3
    s_cselect_b32 s52, 0, -1
    s_mov_b32 s53, s52
    s_cselect_b32 s54, 2, 3
    s_lshl_b32 s54, s54, 7
    s_barrier
    s_barrier
    L_fh:
    s_load_dwordx4 s[64:67], s[58:59], 0 glc
    s_load_dwordx4 s[68:71], s[58:59], 128 glc
    s_load_dwordx4 s[72:75], s[58:59], 256 glc
    s_load_dwordx4 s[76:79], s[58:59], s54 glc""")
    g.tmo()
    g("s_waitcnt lgkmcnt(0)")
    for k in range(8):
        g(f"s_cmp_lg_u64 s[{64+2*k}:{65+2*k}], s[50:51]")
        g("s_cbranch_scc1 L_fh")
    g.stamp(8)
    g("L_fp:")
    for n_ in range(3):
        g(f"buffer_load_dwordx4 v[{56+4*n_}:{59+4*n_}], v15, s[32:35], 0 offen offset:{1024*n_} sc1")
    g("""s_mov_b64 exec, s[52:53]
    s_cbranch_execz L_f3
    buffer_load_dwordx4 v[68:71], v15, s[32:35], 0 offen offset:3072 sc1
    s_waitcnt vmcnt(0)""")
    g.tagcheck(68, 1, 2)
    g("""s_cbranch_vccnz L_fp
    L_f3:
    s_mov_b64 exec, -1""")
    g.tmo()
    g("s_waitcnt vmcnt(0)")
    for n_ in range(3):
        g.tagcheck(56 + 4 * n_, 1, 2)
        g("s_cbranch_vccnz L_fp")
    g.stamp(9)
    g("""v_pk_add_f32 v[56:57], v[56:57], v[60:61]
    v_pk_add_f32 v[58:59], v[58:59], v[62:63]
    v_pk_add_f32 v[64:65], v[64:65], v[68:69]
    v_pk_add_f32 v[66:67], v[66:67], v[70:71]
    v_pk_add_f32 v[56:57], v[56:57], v[64:65]
    v_pk_add_f32 v[58:59], v[58:59], v[66:67]
    s_nop 1""")
    rowsum4(g, 56)
    g("""ds_write_b32 v16, v56
    s_waitcnt lgkmcnt(0)
    s_barrier
    s_cmp_lg_u32 s60, 0""")
    g("s_cbranch_scc1 " + ("L_diag" if o.diag else "L_bail"))
    if o.hold:
        g(f"""L_hold:
        s_memrealtime s[96:97]
        s_waitcnt lgkmcnt(0)
        s_sub_u32 s96, s96, s98
        s_cmp_lt_u32 s96, {o.hold}
        s_cbranch_scc1 L_hold""")
    g("""ds_read_b128 v[56:59], v17
    s_waitcnt lgkmcnt(0)
    v_add_f32 v58, v58, v59
    v_add_f32 v56, v56, v57""")
    bf16r(g, 57, 58)
    bf16r(g, 56, 56)
    g("v_add_f32 v57, v57, v78")
    bf16r(g, 57, 57)
    g(f"""v_mul_f32 v1, {LOG2E | 0x80000000:#x}, v57
    v_exp_f32 v1, v1
    s_nop 0
    v_add_f32 v1, 1.0, v1
    v_rcp_f32 v1, v1
    s_nop 0
    v_mul_f32 v57, v57, v1""")
    bf16r(g, 57, 57)
    g("v_mul_f32 v56, v56, v57")
    bf16r(g, 56, 56)
    g(f"""v_add_f32 v56, v56, v79
    v_cvt_pk_bf16_f32 v56, v56, v56
    global_store_short v19, v56, s[24:25]
    s_cmpk_lg_u32 s2, 224
    s_cbranch_scc1 L_end3
    v_mov_b32 v1, 0
    v_mov_b32 v2, s40
    s_mov_b64 exec, 1
    buffer_store_dword v2, v1, s[32:35], 0 offen sc1
    L_end3:""")
    g.stamp(10)
    if o.diag:
        g("L_diag:")
        g("s_mov_b64 exec, 1")
        g("s_waitcnt lgkmcnt(0)")
        g(f"""s_mul_i32 s44, s2, 12
        s_add_u32 s44, s44, s3
        s_lshl_b32 s44, s44, 6
        s_add_u32 s44, s44, {W_ST}
        v_mov_b32 v1, s44""")
        for k in range(11):
            g(f"v_mov_b32 v2, s{80+2*k}")
            g(f"buffer_store_dword v2, v1, s[32:35], 0 offen offset:{4*k}")
        g("v_mov_b32 v2, s42")
        g("buffer_store_dword v2, v1, s[32:35], 0 offen offset:44")
    g("s_endpgm")
    assert g.npad == 8, g.npad
    body = "\n".join(g.L)
    return HEADER + f"""; @launch grid=(256,1,1) block=(768,1,1) lds={LDS_BYTES}
.amdgcn_target "amdgcn-amd-amdhsa--gfx950"
.text
.globl {KN}
.p2align 8
.type {KN},@function
{KN}:
{body}
.section .rodata,"a"
.p2align 6
.amdhsa_kernel {KN}
  .amdhsa_next_free_vgpr 80
  .amdhsa_next_free_sgpr 102
  .amdhsa_accum_offset 80
  .amdhsa_group_segment_fixed_size 0
  .amdhsa_kernarg_size 104
  .amdhsa_user_sgpr_count 2
  .amdhsa_user_sgpr_kernarg_segment_ptr 1
  .amdhsa_system_sgpr_workgroup_id_x 1
.end_amdhsa_kernel
"""


def parse(argv):
    ap = argparse.ArgumentParser()
    ap.add_argument("-o", default="k.s")
    ap.add_argument("--diag", action="store_true")
    ap.add_argument("--win", type=int, default=8)
    ap.add_argument("--nt", default="nt")
    ap.add_argument("--xnt", default="")
    ap.add_argument("--lprio", type=int, default=3)
    ap.add_argument("--spin", type=int, default=0x40000)
    ap.add_argument("--qsleep", type=int, default=0)
    ap.add_argument("--qdiag", action="store_true")
    ap.add_argument("--qatom", type=int, default=1)
    ap.add_argument("--pace", type=int, default=9)
    ap.add_argument("--cprio", type=int, default=0)
    ap.add_argument("--hold", type=int, default=0)
    return ap.parse_args(argv)


if __name__ == "__main__":
    o = parse(sys.argv[1:])
    open(o.o, "w").write(build(o))
```
